```python
import torch

def _softmax(x, axis=-1):
    return torch.softmax(x, dim=axis)

def _gelu(x):
    return torch.nn.functional.gelu(x, approximate='tanh')

def _silu(x):
    return torch.nn.functional.silu(x)

def _sigmoid(x):
    return torch.sigmoid(x)

def _layernorm(x, axis=-1, eps=1e-05):
    m = x.mean(dim=axis, keepdim=True)
    v = x.var(dim=axis, keepdim=True, unbiased=False)
    return (x - m) / torch.sqrt(v + eps)

def _scatter_add(tgt, idx, src, axis=0):
    return tgt.clone().index_add_(axis, idx, src)

def _segment_sum(src, seg, n):
    out = torch.zeros((n,) + src.shape[1:], dtype=src.dtype)
    return out.index_add_(0, seg, src)

def _pad(x, pw):
    flat = tuple((v for pair in reversed(pw) for v in pair))
    return torch.nn.functional.pad(x, flat)
kernel_name = 'adaLN_cond__spectral_gfnet__glu_gated_bilinear__prompt'

def setup_inputs():

    _w = lambda a: (lambda t: t.to(torch.bfloat16) if t.is_floating_point() else t)(torch.as_tensor(a))

    def _A_setup():
        B, S, D = (1, 2048, 512)
        Df = D // 2 + 1
        return {'x': _w((lambda *s: torch.randn(*s, dtype=torch.bfloat16) * 0.05)(B, S, D)), 'w_r': _w((lambda *s: torch.randn(*s, dtype=torch.bfloat16) * 3.2)(S, Df) * 0.02), 'w_i': _w((lambda *s: torch.randn(*s, dtype=torch.bfloat16) * 3.2)(S, Df) * 0.02)}
    _A_in = _A_setup()

    def _B_setup():
        B, S, D, F = (1, 2048, 512, 1376)
        return {'x': _w((lambda *s: torch.randn(*s, dtype=torch.bfloat16) * 0.05)(B, S, D)), 'w_gate': _w((lambda *s: torch.randn(*s, dtype=torch.bfloat16) * 0.4)(D, F) * D ** (-0.5)), 'w_up': _w((lambda *s: torch.randn(*s, dtype=torch.bfloat16) * 0.4)(D, F) * D ** (-0.5)), 'w_down': _w((lambda *s: torch.randn(*s, dtype=torch.bfloat16) * 0.4)(F, D) * F ** (-0.5))}
    _B_in = _B_setup()
    return {'A_x': _A_in['x'], 'A_w_r': _A_in['w_r'], 'A_w_i': _A_in['w_i'], 'B_x': _B_in['x'], 'B_w_gate': _B_in['w_gate'], 'B_w_up': _B_in['w_up'], 'B_w_down': _B_in['w_down'], 'c': _w((lambda *s: torch.randn(*s, dtype=torch.bfloat16) * 0.1)(1, 512) * 8.0), 'w_mod': _w((lambda *s: torch.randn(*s, dtype=torch.bfloat16) * 0.1)(512, 6 * 512) * 512 ** (-0.5) * 8.0)}

def reference(A_x, A_w_r, A_w_i, B_x, B_w_gate, B_w_up, B_w_down, c, w_mod):

    def _A_ref(x, w_r, w_i):
        B, S, D = x.shape
        X = (lambda x, axes=(-2, -1): torch.fft.rfft2(x.float(), dim=axes))(x, axes=(-2, -1))
        W = w_r + 1j * w_i
        X = X * W
        y = (lambda x, s, axes=(-2, -1): torch.fft.irfft2(x, s=s, dim=axes).to(torch.bfloat16))(X, (S, D), axes=(-2, -1))
        return y

    def _B_ref(x, w_gate, w_up, w_down):
        g = torch.einsum('bsd,df->bsf', x, w_gate)
        u = torch.einsum('bsd,df->bsf', x, w_up)
        h = g * u
        return torch.einsum('bsf,fd->bsd', h, w_down)
    x = A_x
    mod = (_silu(c) @ w_mod).reshape(c.shape[0], 6, 1, -1)
    sa, ca, ga, sb, cb, gb = (mod[:, 0].clone(), mod[:, 1].clone(), mod[:, 2].clone(), mod[:, 3].clone(), mod[:, 4].clone(), mod[:, 5].clone())
    h = _layernorm(x, axis=-1) * (1 + ca) + sa
    x = x + ga * _A_ref(h, A_w_r, A_w_i)
    h = _layernorm(x, axis=-1) * (1 + cb) + sb
    x = x + gb * _B_ref(h, B_w_gate, B_w_up, B_w_down)
    return x
```

```python
import re
class Asm:
    def __init__(self):
        self.lines = []
    def __call__(self, s):
        for ln in s.strip("\n").split("\n"):
            ln = ln.strip()
            if ln: self.lines.append(ln)
    def label(self, name): self.lines.append(name + ":")
    def comment(self, s): self.lines.append("; " + s)
    def text(self):
        return "\n".join(fix_hazards(self.lines)) + "\n"

_REG = re.compile(r"^(-|abs\()?([vas])(?:(\d+)|\[(\d+):(\d+)\])\)?$")
def regs(op):
    op = op.strip()
    if op == "vcc": return {("s", 106), ("s", 107)}
    if op == "exec": return {("s", 126), ("s", 127)}
    if op == "m0": return {("s", 124)}
    m = _REG.match(op)
    if not m: return set()
    k = m.group(2)
    if m.group(3) is not None: return {(k, int(m.group(3)))}
    return {(k, i) for i in range(int(m.group(4)), int(m.group(5)) + 1)}
TRANS = ("v_exp_f32", "v_log_f32", "v_rcp_f32", "v_rsq_f32", "v_sqrt_f32", "v_sin_f32", "v_cos_f32")
class Ins:
    pass
def parse(line):
    code = line.split(";")[0].strip()
    if not code or code.endswith(":") or code.startswith("."): return None
    parts = code.split(None, 1)
    mn = parts[0]
    rest = parts[1] if len(parts) > 1 else ""
    ops = [o.strip() for o in re.split(r",(?![^\[]*\])", rest)] if rest else []
    mods = ""
    if ops:
        sp = ops[-1].split(None, 1)
        ops[-1] = sp[0]
        if len(sp) > 1: mods = sp[1]
    I = Ins(); I.mn = mn; I.ops = ops; I.mods = mods; I.line = line
    I.w = set(); I.r = set(); I.kind = "other"; I.passes = 0; I.srcC = set(); I.srcAB = set(); I.data = set()
    R = [regs(o) for o in ops]
    allr = lambda xs: set().union(*xs) if xs else set()
    if mn.startswith("v_mfma"):
        I.kind = "mfma"; I.w = R[0]; I.srcAB = R[1] | R[2]; I.srcC = R[3]; I.r = I.srcAB | I.srcC
        I.passes = 8 if "32x32x16" in mn else 4 if "16x16x32" in mn else 16
    elif mn.startswith("v_"):
        I.kind = "valu"
        if mn.startswith("v_permlane") and "swap" in mn:
            I.w = R[0] | R[1]; I.r = R[0] | R[1]
        elif mn.startswith(("v_add_co", "v_sub_co", "v_addc_co", "v_subb_co", "v_subrev_co")):
            I.w = R[0] | R[1]; I.r = allr(R[2:])
        else:
            I.w = R[0]; I.r = allr(R[1:])
            if mn.startswith(("v_fmac", "v_dot2c", "v_pk_fmac", "v_writelane")): I.r |= R[0]
            if mn.startswith("v_cmpx"): I.w |= regs("exec")
    elif mn.startswith("ds_"):
        I.kind = "ds"
        if mn.startswith(("ds_read", "ds_bpermute", "ds_permute", "ds_swizzle")):
            I.w = R[0]; I.r = allr(R[1:])
            if "d16" in mn: I.r |= R[0]
        else: I.r = allr(R)
    elif mn.startswith(("buffer_", "global_")):
        I.kind = "vmem"
        islds = ("lds" in mods.split()) or ("_lds_" in mn)
        if "load" in mn and not islds:
            I.w = R[0]; I.r = allr(R[1:])
            if "d16" in mn: I.r |= R[0]
        else:
            I.r = allr(R)
            if islds: I.r |= regs("m0"); I.kind = "ldsdma"
            if "store" in mn and ("x4" in mn or "x3" in mn):
                I.data = R[0] if mn.startswith("buffer_") else R[1]
    elif mn.startswith("s_"):
        I.kind = "salu"
        if mn in ("s_nop", "s_waitcnt", "s_barrier", "s_endpgm", "s_setprio", "s_sleep") or mn.startswith(("s_cbranch", "s_branch", "s_cmp")):
            I.r = allr(R)
        else:
            I.w = R[0] if R else set(); I.r = allr(R[1:])
            if "saveexec" in mn: I.w |= regs("exec")
    return I
def need(P, C):
    n = 0
    Pv = {x for x in P.w if x[0] in "va"}; Ps = {x for x in P.w if x[0] == "s"}
    if P.kind == "valu":
        isdot = P.mn.startswith("v_dot")
        if C.kind == "mfma" and (Pv & C.r): n = max(n, 3 if isdot else 2)
        if C.kind == "valu":
            if C.mn.startswith("v_permlane") and (Pv & C.r): n = max(n, 2)
            if ("_dpp" in C.mn or "row_" in C.mods or "quad_perm" in C.mods) and (Pv & C.r): n = max(n, 2)
            if C.mn.startswith(("v_readfirstlane", "v_readlane")) and (Pv & C.r): n = max(n, 1)
            if P.mn.replace("_e32", "").replace("_e64", "") in TRANS and (Pv & C.r): n = max(n, 1)
            if ("sdwa" in P.mn or "op_sel" in P.mods) and not P.mn.startswith("v_pk_") and (Pv & (C.r | C.w)): n = max(n, 1)
            if Ps & C.r:
                n = max(n, 4 if C.mn.startswith(("v_readlane", "v_writelane")) else 2)
            if (("s", 126) in Ps):
                if C.mn.startswith(("v_readlane", "v_readfirstlane", "v_writelane", "v_permlane")): n = max(n, 4)
                if "_dpp" in C.mn: n = max(n, 5)
        if isdot and (Pv & (C.r | C.w)):
            if not (C.mn == P.mn and not (Pv & set().union(*[regs(o) for o in C.ops[1:3]]))): n = max(n, 3)
        if C.kind in ("vmem", "ldsdma") and (Ps & C.r): n = max(n, 5)
        if C.kind == "mfma" and (("s", 126) in Ps): n = max(n, 4)
    if P.kind == "mfma":
        big = {4: 8, 8: 12, 16: 20}[P.passes]; ovl = {4: 6, 8: 10, 16: 18}[P.passes]; war = {4: 3, 8: 7, 16: 15}[P.passes]
        if C.kind == "mfma":
            if P.w & C.srcAB: n = max(n, big)
            if P.w & C.srcC:
                if not (P.w == C.srcC and P.passes == C.passes): n = max(n, ovl)
            elif P.w & C.w: n = max(n, big)
        elif C.kind in ("valu", "ds", "vmem", "ldsdma"):
            if P.w & (C.r | C.w): n = max(n, big)
            if C.kind == "valu" and (P.srcC & C.w): n = max(n, war)
    if P.kind == "salu" and (("s", 124) in P.w) and C.kind == "ldsdma": n = max(n, 1)
    if P.kind == "salu" and (("s", 124) in P.w) and C.mn.startswith(("v_movrel", "s_movrel")): n = max(n, 1)
    if P.kind == "vmem" and P.data and (P.data & C.w): n = max(n, 2 if C.kind == "valu" else 1)
    return n
def fix_hazards(lines):
    out = []; hist = []
    for ln in lines:
        I = parse(ln)
        if I is None:
            out.append(ln); continue
        req = 0
        for P, dist in hist:
            k = need(P, I) - dist
            if k > req: req = k
        if req > 0:
            r = req
            while r > 0:
                t = min(r, 16); out.append(f"s_nop {t-1}"); r -= t
            for h in hist: h[1] += req
        out.append(ln)
        step = 1
        if I.mn == "s_nop": step = int(I.ops[0], 0) + 1
        for h in hist: h[1] += step
        hist = [h for h in hist if h[1] < 24]
        hist.append([I, 0])
    return out
def longs(arr, per=16):
    import numpy as np
    w = np.ascontiguousarray(arr).view(np.uint32).ravel()
    out = []
    for i in range(0, len(w), per):
        out.append(".long " + ",".join("0x%x" % v for v in w[i:i + per]))
    return "\n".join(out)
```

```python
import numpy as np
def bf2f(u): return (np.asarray(u).astype(np.uint32) << 16).view(np.float32)
def f2bf(x):
    x = np.ascontiguousarray(x, dtype=np.float32)
    u = x.view(np.uint32).astype(np.uint64)
    r = (u + 0x7FFF + ((u >> 16) & 1)) >> 16
    return r.astype(np.uint16)
def rb(x): return bf2f(f2bf(x))

MOD_OFF   = 0x0
CA1K_OFF  = 0x4000
SA64K_OFF = 0x5000
ABUF_OFF  = 0x100000
WF_OFF    = 0x300000
VBUF_OFF  = 0x600000
WGU_OFF   = 0x800000
WD_OFF    = 0xB00000
XN_OFF    = 0xD00000
HM_OFF    = 0x1000000
WS_SIZE   = 0x2000000
OOB       = 0x40000000

def d2_of(cc, e):
    return 8 * cc + 2 * (e % 4) + e // 4

def frag32(fn):
    out = np.zeros((64, 8), np.float64)
    for l in range(64):
        for e in range(8):
            out[l, e] = fn(l % 32, l // 32, e)
    return out
def frag16(fn):
    out = np.zeros((64, 8), np.float64)
    for l in range(64):
        for e in range(8):
            out[l, e] = fn(l % 16, l // 16, e)
    return out
PI2 = 2 * np.pi
def tab_F1():
    fr = []
    for c in range(2):
        for ks in range(4):
            def fn(j, h, e):
                s1 = 16 * ks + 8 * h + e
                if j == 0: return 1.0 if c == 0 else (-1.0) ** s1
                return np.cos(PI2 * s1 * j / 64) if c == 0 else -np.sin(PI2 * s1 * j / 64)
            fr.append(frag32(fn))
    return f2bf(np.stack(fr))
def tab_G1():
    fr = []
    for st in range(2):
        for ks in range(4):
            def fn(j, h, e):
                k1p = 16 * ks + 8 * h + e
                slot, c = k1p // 2, k1p % 2
                s1 = 32 * st + j
                if slot == 0: v = 1.0 if c == 0 else (-1.0) ** s1
                else: v = 2 * np.cos(PI2 * s1 * slot / 64) if c == 0 else -2 * np.sin(PI2 * s1 * slot / 64)
                return v / 2048
            fr.append(frag32(fn))
    return f2bf(np.stack(fr))
def tab_TA(p):
    fr = []
    for c in range(2):
        for u in range(2):
            def fn(j, h, e):
                d2 = d2_of(2 * u + h, e); kB = 2 * (j % 16) + p; cp = j // 16
                ph = PI2 * d2 * kB / 32
                if c == 0: return np.cos(ph) if cp == 0 else -np.sin(ph)
                return np.sin(ph) if cp == 0 else np.cos(ph)
            fr.append(frag32(fn))
    return np.stack(fr).astype(np.float32)
def nu(t, i):
    q, r = i // 4, i % 4
    return 8 * (t + 2 * (q % 2)) + 4 * (q // 2) + r
def tab_TS():
    fr = []
    for t in range(2):
        for cp in range(2):
            for v in range(2):
                def fn(j, q, e):
                    r, c = e // 2, e % 2
                    a = nu(v, 4 * q + r); b = nu(t, j)
                    ph = PI2 * a * b / 32
                    if cp == 0: return np.cos(ph) if c == 0 else np.sin(ph)
                    return -np.sin(ph) if c == 0 else np.cos(ph)
                fr.append(frag16(fn))
    return f2bf(np.stack(fr))
def tab_TBf(p):
    fr = []
    for v in range(2):
        def fn(i, h, e):
            g, hp, r = i // 8, (i // 4) % 2, i % 4
            kA = 4 * g + 2 * hp + r // 2; cp = r % 2
            d1 = 8 * v + 4 * h + e // 2; c = e % 2
            ph = PI2 * d1 * (32 * kA + p) / 512
            if cp == 0: return np.cos(ph) if c == 0 else np.sin(ph)
            return -np.sin(ph) if c == 0 else np.cos(ph)
        fr.append(frag32(fn))
    return f2bf(np.stack(fr))
def tab_TBi(p):
    fr = []
    for v in range(2):
        def fn(j, h, e):
            d1, cp = j % 16, j // 16
            g = 2 * v + e // 4; b = (e // 2) % 2; c = e % 2
            kA = 4 * g + 2 * h + b
            ph = PI2 * d1 * (32 * kA + p) / 512
            if cp == 0: v_ = np.cos(ph) if c == 0 else -np.sin(ph)
            else: v_ = -(np.sin(ph) if c == 0 else np.cos(ph))
            return v_ / 16
        fr.append(frag32(fn))
    return f2bf(np.stack(fr))
def tab_TAi(p):
    fr = []
    for v in range(2):
        def fn(j, h, e):
            d2, cp = j % 16, j // 16
            kBi = 8 * v + 4 * h + e // 2; c = e % 2
            ph = PI2 * d2 * (2 * kBi + p) / 32
            if cp == 0: v_ = np.cos(ph) if c == 0 else np.sin(ph)
            else: v_ = np.sin(ph) if c == 0 else -np.cos(ph)
            return v_ / 32
        fr.append(frag32(fn))
    return f2bf(np.stack(fr))
```

```python
from common import *
from asmlib import *

def srd(a, d, lo, hi, nbytes):
    a(f"""s_mov_b32 s{d}, s{lo}
    s_mov_b32 s{d+1}, s{hi}
    s_mov_b32 s{d+2}, {hex(nbytes)}
    s_mov_b32 s{d+3}, 0x00020000""")
def tab_srd(a, d, label, nbytes):
    a(f"""s_getpc_b64 s[{d}:{d+1}]
    s_add_u32 s{d}, s{d}, {label}@rel32@lo+4
    s_addc_u32 s{d+1}, s{d+1}, {label}@rel32@hi+12
    s_mov_b32 s{d+2}, {hex(nbytes)}
    s_mov_b32 s{d+3}, 0x00020000""")

K1_MAIN, K1_WF, K1_GEMV = 128, 66, 48
K1_GRID = K1_MAIN + K1_WF + K1_GEMV
K1_LDS = 64 * 288
MIMIC1 = True

def k1(a):
    a.label("k1_kernel")
    a(f"""s_cmp_ge_u32 s2, {K1_GRID}
    s_cbranch_scc1 K1_END
    s_load_dwordx2 s[6:7], s[0:1], 88
    s_cmp_ge_u32 s2, {K1_MAIN + K1_WF}
    s_cbranch_scc1 K1_GEMV
    s_cmp_ge_u32 s2, {K1_MAIN}
    s_cbranch_scc1 K1_WF""")
    X = 16
    F = 80
    a(f"""s_load_dwordx2 s[4:5], s[0:1], 0
    s_and_b32 s20, s2, 7
    s_lshl_b32 s20, s20, 2
    s_lshr_b32 s21, s2, 3
    s_and_b32 s21, s21, 3
    s_add_u32 s20, s20, s21          ; s20 = s2v
    s_lshr_b32 s21, s2, 5            ; s21 = cc
    s_lshl_b32 s22, s20, 10          ; s2v*1024
    v_lshrrev_b32 v1, 6, v0          ; w
    v_and_b32 v2, 15, v0
    v_lshl_add_u32 v2, v1, 4, v2     ; rho
    v_bfe_u32 v3, v0, 4, 2           ; q
    v_lshlrev_b32 v4, 15, v2
    v_lshl_add_u32 v4, v3, 4, v4     ; voff_x""")
    for j in range(4):
        a(f"""s_add_u32 s{24+j}, s21, {j}
        s_and_b32 s{24+j}, s{24+j}, 3
        s_lshl_b32 s{24+j}, s{24+j}, 8
        s_add_u32 s{24+j}, s{24+j}, s22""")
    tab_srd(a, 16, "TAB_F1", 8192)
    a("v_and_b32 v5, 63, v0\nv_lshlrev_b32 v5, 4, v5      ; lane*16")
    a("s_waitcnt lgkmcnt(0)")
    srd(a, 8, 4, 5, 2048 * 1024)
    srd(a, 12, 6, 7, WS_SIZE)
    for t in range(16):
        a(f"buffer_load_dwordx4 v[{X+4*t}:{X+4*t+3}], v4, s[8:11], s{24+t//4} offen offset:{64*(t%4)}")
    a("s_movk_i32 s28, 0x1000")
    for f in range(8):
        a(f"buffer_load_dwordx4 v[{F+4*f}:{F+4*f+3}], v5, s[16:19], {'s28' if f >= 4 else '0'} offen offset:{1024*(f%4)}")
    a(f"""v_mul_u32_u24 v6, 288, v2
    v_lshl_add_u32 v6, v3, 6, v6
    v_and_b32 v7, 3, v0               ; c
    v_bfe_u32 v8, v0, 2, 2            ; rr
    v_bfe_u32 v9, v0, 4, 1            ; G%2
    v_bfe_u32 v10, v0, 5, 1           ; G/2 (= h')
    v_and_b32 v11, 1, v7
    v_lshl_add_u32 v11, v11, 1, v9    ; d1t
    v_lshl_add_u32 v11, v1, 2, v11    ; d1
    v_lshrrev_b32 v12, 3, v11         ; d1/8
    v_lshrrev_b32 v13, 1, v7          ; eh
    v_lshl_add_u32 v12, v13, 1, v12   ; q src
    v_lshlrev_b32 v12, 6, v12
    v_and_b32 v11, 7, v11
    v_lshl_add_u32 v12, v11, 3, v12
    v_lshl_add_u32 v8, v10, 3, v8
    v_mul_u32_u24 v8, 288, v8
    v_add_u32 v7, v8, v12
    v_and_b32 v8, 31, v0              ; slot
    v_lshlrev_b32 v8, 16, v8
    v_lshl_add_u32 v9, v1, 1, v10     ; 2w + h'
    v_lshl_add_u32 v8, v9, 13, v8
    s_lshr_b32 s30, s21, 1
    s_lshl_b32 s30, s30, 10
    s_lshl_b32 s31, s20, 5
    s_add_u32 s30, s30, s31
    s_and_b32 s31, s21, 1
    s_lshl_b32 s31, s31, 4
    s_add_u32 s30, s30, s31
    s_add_u32 s30, s30, {hex(ABUF_OFF)}
    s_add_u32 s31, s30, 0x1000
    v_mov_b32 v9, 0x3f803f80
    v_mov_b32 v10, 0
    v_mov_b32 v11, 0
    v_mov_b32 v12, 0
    v_mov_b32 v13, 0""")
    for t in range(16):
        if t % 2 == 0: a(f"s_waitcnt vmcnt({8 + 14 - t})")
        for j in range(4):
            r = X + 4 * t + j
            a(f"v_dot2c_f32_bf16 v{10 + (j%2)}, v{r}, v9")
            a(f"v_dot2c_f32_bf16 v{12 + (j%2)}, v{r}, v{r}")
    a("""v_add_f32 v10, v10, v11
    v_add_f32 v12, v12, v13
    v_mov_b32 v11, v10
    v_mov_b32 v13, v12
    v_permlane16_swap_b32 v10, v11
    v_permlane16_swap_b32 v12, v13
    v_add_f32 v10, v10, v11
    v_add_f32 v12, v12, v13
    v_mov_b32 v11, v10
    v_mov_b32 v13, v12
    v_permlane32_swap_b32 v10, v11
    v_permlane32_swap_b32 v12, v13
    v_add_f32 v10, v10, v11
    v_add_f32 v12, v12, v13
    v_mul_f32 v10, 0x3b000000, v10      ; mean
    v_mul_f32 v12, 0x3b000000, v12
    v_fma_f32 v12, -v10, v10, v12       ; var
    v_max_f32 v12, 0, v12""")
    if MIMIC1:
        a("""v_cvt_pk_bf16_f32 v11, v10, v12
        v_lshlrev_b32 v10, 16, v11
        v_and_b32 v12, 0xffff0000, v11
        v_add_f32 v12, 0x3727c5ac, v12
        v_cvt_pk_bf16_f32 v12, v12, v12
        v_lshlrev_b32 v12, 16, v12
        v_sqrt_f32 v12, v12
        v_cvt_pk_bf16_f32 v12, v12, v12
        v_lshlrev_b32 v12, 16, v12
        v_rcp_f32 v12, v12""")
    else:
        a("""v_add_f32 v12, 0x3727c5ac, v12
        v_rsq_f32 v12, v12""")
    O = X + 16
    T = X + 32
    for j in range(4):
        for hi in range(2):
            d1l = 2 * j + hi
            for tp in range(2):
                t0 = T + 2 * ((d1l * 2 + tp) % 8)
                for z in range(2):
                    src = X + 4 * (2 * tp + z) + j
                    if hi: a(f"v_and_b32 v{t0+z}, 0xffff0000, v{src}")
                    else: a(f"v_lshlrev_b32 v{t0+z}, 16, v{src}")
                a(f"v_pk_add_f32 v[{t0}:{t0+1}], v[{t0}:{t0+1}], v[10:11] op_sel_hi:[1,0] neg_lo:[0,1] neg_hi:[0,1]")
                if MIMIC1:
                    a(f"""v_cvt_pk_bf16_f32 v{t0+1}, v{t0}, v{t0+1}
                    v_lshlrev_b32 v{t0}, 16, v{t0+1}
                    v_and_b32 v{t0+1}, 0xffff0000, v{t0+1}""")
                a(f"v_pk_mul_f32 v[{t0}:{t0+1}], v[{t0}:{t0+1}], v[12:13] op_sel_hi:[1,0]")
                a(f"v_cvt_pk_bf16_f32 v{O + 2*d1l + tp}, v{t0}, v{t0+1}")
        a(f"ds_write_b128 v6, v[{O+4*j}:{O+4*j+3}] offset:{16*j}")
    a("s_waitcnt lgkmcnt(0)\ns_barrier")
    A = X
    ACC = X + 32
    for ks in range(4):
        for hf in range(2):
            a(f"ds_read_b64_tr_b16 v[{A+4*ks+2*hf}:{A+4*ks+2*hf+1}], v7 offset:{(16*ks+4*hf)*288}")
    a("s_waitcnt vmcnt(0)")
    for ks in range(4):
        a(f"s_waitcnt lgkmcnt({6-2*ks})")
        for nt in range(2):
            c = "0" if ks == 0 else f"v[{ACC+16*nt}:{ACC+16*nt+15}]"
            a(f"v_mfma_f32_32x32x16_bf16 v[{ACC+16*nt}:{ACC+16*nt+15}], v[{A+4*ks}:{A+4*ks+3}], v[{F+4*(4*nt+ks)}:{F+4*(4*nt+ks)+3}], {c}")
    P = X + 16
    for nt in range(2):
        for gm in range(2):
            pb = P + 4 * (2 * nt + gm)
            for z in range(4):
                s = ACC + 16 * nt + 8 * gm + 2 * z
                a(f"v_cvt_pk_bf16_f32 v{pb+z}, v{s}, v{s+1}")
            a(f"buffer_store_dwordx4 v[{pb}:{pb+3}], v8, s[12:15], s{30+gm} offen offset:{2048*nt}")
    a("s_endpgm")
    a.label("K1_WF")
    a(f"""s_load_dwordx4 s[16:19], s[0:1], 8      ; w_r, w_i
    s_sub_u32 s20, s2, {K1_MAIN}
    s_lshr_b32 s21, s20, 1            ; g
    s_and_b32 s22, s20, 1             ; fr
    v_lshrrev_b32 v1, 6, v0           ; wave
    v_and_b32 v2, 1, v1               ; kh
    v_lshrrev_b32 v3, 1, v1           ; h'
    v_bfe_u32 v4, v0, 2, 4            ; k2l
    v_and_b32 v5, 3, v0               ; wq
    v_lshl_add_u32 v4, v2, 4, v4      ; k2
    v_lshlrev_b32 v6, 6, v4
    v_add_u32 v6, s21, v6             ; k
    v_sub_u32 v7, 0x800, v6
    v_and_b32 v7, 0x7ff, v7           ; -k
    v_mul_u32_u24 v6, 514, v6
    v_mul_u32_u24 v7, 514, v7
    v_lshlrev_b32 v8, 7, v3
    v_lshl_add_u32 v8, v5, 4, v8      ; 128h' + 16wq
    v_add_u32 v9, v6, v8              ; fr=0 addr (x: +64*(4(x/2)+x%2))
    v_sub_u32 v10, v7, v8
    v_add_u32 v10, {2*(512-256-7) - 64*5}, v10
    s_lshl_b32 s27, s22, 9
    s_cmp_eq_u32 s22, 0
    s_cselect_b64 s[24:25], -1, 0
    s_cselect_b32 s26, 0, 0x80008000
    v_cndmask_b32 v9, v10, v9, s[24:25]""")
    for x, kx in enumerate((0, 1, 4, 5)):
        a(f"s_mov_b32 s{28+x}, {64*(5-kx)}\ns_cmov_b32 s{28+x}, {64*kx}")
    a(f"""s_lshl_b32 s23, s21, 16
    s_lshl_b32 s40, s22, 10
    s_add_u32 s23, s23, s40
    s_add_u32 s23, s23, {hex(WF_OFF)}
    s_cmp_eq_u32 s22, 0""")
    for jj in range(8):
        o = lambda j: (j % 2) * 32768 + (j // 2) * 2048
        a(f"s_mov_b32 s{32+jj}, {o(7-jj)}\ns_cmov_b32 s{32+jj}, {o(jj)}")
    for jj in range(8):
        a(f"s_add_u32 s{32+jj}, s{32+jj}, s23")
    a("s_waitcnt lgkmcnt(0)")
    srd(a, 8, 16, 17, 2048 * 514)
    srd(a, 44, 18, 19, 2048 * 514)
    srd(a, 12, 6, 7, WS_SIZE)
    Rr, Ii = 16, 32
    for x in range(4):
        a(f"buffer_load_dwordx4 v[{Rr+4*x}:{Rr+4*x+3}], v9, s[8:11], s{28+x} offen")
        a(f"buffer_load_dwordx4 v[{Ii+4*x}:{Ii+4*x+3}], v9, s[44:47], s{28+x} offen")
    a(f"""buffer_load_ushort v48, v6, s[8:11], s27 offen
    buffer_load_ushort v49, v6, s[44:47], s27 offen
    buffer_load_ushort v50, v7, s[8:11], s27 offen
    buffer_load_ushort v51, v7, s[44:47], s27 offen
    v_lshl_add_u32 v11, v3, 5, v4     ; lane' = k2 + 32h'
    v_lshlrev_b32 v11, 4, v11
    v_lshl_add_u32 v11, v5, 13, v11   ; + wq*4*2048
    v_cmp_eq_u32 vcc, 0, v8           ; h'==0 && wq==0
    s_and_b64 s[48:49], vcc, s[24:25]
    s_andn2_b64 s[50:51], vcc, s[24:25]
    s_mov_b32 s41, 0x05040100
    s_mov_b32 s42, 0x07060302
    s_waitcnt vmcnt(0)
    v_lshlrev_b32 v48, 16, v48
    v_lshlrev_b32 v49, 16, v49
    v_lshlrev_b32 v50, 16, v50
    v_lshlrev_b32 v51, 16, v51
    v_add_f32 v48, v48, v50
    v_sub_f32 v49, v49, v51
    v_mul_f32 v48, 0.5, v48
    v_mul_f32 v49, 0.5, v49
    v_cvt_pk_bf16_f32 v48, v48, v49""")
    for r in range(16):
        a(f"v_xor_b32 v{Ii+r}, s26, v{Ii+r}")
    for jj in range(8):
        ob = 52 + 4 * (jj % 4)
        for x in range(4):
            a(f"v_perm_b32 v{ob+x}, v{Ii+4*x+jj//2}, v{Rr+4*x+jj//2}, s{41 + jj%2}")
        if jj == 0: a(f"v_cndmask_b32 v{ob}, v{ob}, v48, s[48:49]")
        if jj == 7: a(f"v_cndmask_b32 v{ob}, v{ob}, v48, s[50:51]")
        a(f"buffer_store_dwordx4 v[{ob}:{ob+3}], v11, s[12:15], s{32+jj} offen")
    a("s_endpgm")
    a.label("K1_GEMV")
    a(f"""s_load_dwordx4 s[16:19], s[0:1], 56     ; c, w_mod
    s_sub_u32 s20, s2, {K1_MAIN + K1_WF}     ; j
    s_lshl_b32 s21, s20, 7
    v_and_b32 v1, 7, v0                     ; cg
    v_lshrrev_b32 v2, 3, v0                 ; rg
    v_mul_u32_u24 v3, 6144, v2
    v_lshl_add_u32 v3, v1, 4, v3
    v_lshlrev_b32 v4, 2, v0
    s_waitcnt lgkmcnt(0)""")
    srd(a, 8, 16, 17, 1024)
    srd(a, 44, 18, 19, 512 * 6144)
    srd(a, 12, 6, 7, WS_SIZE)
    a("buffer_load_dword v5, v4, s[8:11], 0 offen")
    Wm = 16
    for it in range(16):
        a(f"buffer_load_dwordx4 v[{Wm+4*it}:{Wm+4*it+3}], v3, s[44:47], s21 offen")
        if it < 15: a(f"s_add_u32 s21, s21, {32*6144}")
    a(f"""s_waitcnt vmcnt(16)
    v_lshlrev_b32 v6, 16, v5
    v_and_b32 v7, 0xffff0000, v5
    v_mul_f32 v8, 0xbfb8aa3b, v6
    v_mul_f32 v9, 0xbfb8aa3b, v7
    v_exp_f32 v8, v8
    v_exp_f32 v9, v9
    v_add_f32 v8, 1.0, v8
    v_add_f32 v9, 1.0, v9
    v_rcp_f32 v8, v8
    v_rcp_f32 v9, v9
    v_mul_f32 v6, v6, v8
    v_mul_f32 v7, v7, v9
    v_cvt_pk_bf16_f32 v6, v6, v7
    v_and_b32 v7, 0xffff, v6
    v_lshrrev_b32 v6, 16, v6
    v_and_b32 v8, 15, v0              ; (2t%32)/2
    v_lshrrev_b32 v9, 4, v0           ; it = 2t/32
    v_lshlrev_b32 v8, 7, v8           ; rg*64 bytes (rg = 2*(t%16))
    v_lshl_add_u32 v8, v9, 2, v8
    ds_write2_b32 v8, v7, v6 offset0:0 offset1:16
    v_lshlrev_b32 v9, 6, v2
    s_waitcnt lgkmcnt(0)
    s_barrier""")
    SC = 80
    for z in range(4):
        a(f"ds_read_b128 v[{SC+4*z}:{SC+4*z+3}], v9 offset:{16*z}")
    AC = 112
    for z in range(8): a(f"v_mov_b32 v{AC+z}, 0")
    a("s_waitcnt lgkmcnt(0)")
    for it in range(16):
        a(f"v_lshlrev_b32 v{SC+16+it}, 16, v{SC+it}")
    for it in range(16):
        a(f"s_waitcnt vmcnt({15-it})")
        for z in range(4):
            a(f"v_dot2c_f32_bf16 v{AC+2*z}, v{Wm+4*it+z}, v{SC+it}")
            a(f"v_dot2c_f32_bf16 v{AC+2*z+1}, v{Wm+4*it+z}, v{SC+16+it}")
    a(f"""v_lshlrev_b32 v5, 8, v2
    v_lshl_add_u32 v5, v1, 5, v5
    ds_write_b128 v5, v[{AC}:{AC+3}] offset:4096
    ds_write_b128 v5, v[{AC+4}:{AC+7}] offset:4112
    s_waitcnt lgkmcnt(0)
    s_barrier
    v_and_b32 v6, 63, v0              ; col
    v_lshrrev_b32 v7, 6, v0
    v_lshlrev_b32 v8, 11, v7
    v_lshl_add_u32 v8, v6, 2, v8""")
    for z in range(4):
        a(f"ds_read2st64_b32 v[{16+2*z}:{17+2*z}], v8 offset0:{16+2*z} offset1:{17+2*z}")
    a("""s_waitcnt lgkmcnt(0)
    v_add_f32 v16, v16, v17
    v_add_f32 v18, v18, v19
    v_add_f32 v20, v20, v21
    v_add_f32 v22, v22, v23
    v_add_f32 v16, v16, v18
    v_add_f32 v20, v20, v22
    v_add_f32 v16, v16, v20
    ds_write_b32 v4, v16
    s_waitcnt lgkmcnt(0)
    s_barrier
    v_cmp_gt_u32 vcc, 64, v0
    s_and_saveexec_b64 s[24:25], vcc
    s_cbranch_execz K1_END
    ds_read2st64_b32 v[16:17], v4 offset0:0 offset1:1
    ds_read2st64_b32 v[18:19], v4 offset0:2 offset1:3
    s_lshr_b32 s21, s20, 3            ; part
    s_and_b32 s22, s20, 7
    s_lshl_b32 s22, s22, 6            ; d0
    v_add_u32 v5, s22, v0             ; d
    v_and_b32 v6, 15, v5              ; d1
    v_lshrrev_b32 v7, 7, v5           ; cc
    v_bfe_u32 v8, v5, 4, 1
    v_bfe_u32 v9, v5, 5, 2
    v_lshl_add_u32 v8, v8, 2, v9      ; e
    v_lshl_add_u32 v8, v7, 3, v8
    v_lshl_add_u32 v8, v6, 5, v8
    s_waitcnt lgkmcnt(0)
    v_add_f32 v16, v16, v17
    v_add_f32 v18, v18, v19
    v_add_f32 v16, v16, v18
    v_cvt_pk_bf16_f32 v16, v16, v16
    v_lshlrev_b32 v16, 16, v16
    s_cmp_eq_u32 s21, 1
    s_cselect_b32 s23, 1.0, 0
    s_cmp_eq_u32 s21, 4
    s_cselect_b32 s23, 1.0, s23
    v_add_f32 v16, s23, v16
    v_cvt_pk_bf16_f32 v16, v16, v16
    v_lshlrev_b32 v16, 16, v16
    s_lshl_b32 s23, s20, 8""")
    a(f"""buffer_store_dword v16, v4, s[12:15], s23 offen
    s_cmp_eq_u32 s21, 1
    s_cbranch_scc0 K1_G2
    v_lshlrev_b32 v9, 2, v8
    s_movk_i32 s23, {hex(CA1K_OFF)}
    buffer_store_dword v16, v9, s[12:15], s23 offen""")
    a.label("K1_G2")
    a(f"""s_cmp_eq_u32 s21, 0
    s_cbranch_scc0 K1_END
    v_mul_f32 v16, 0x42800000, v16
    v_lshrrev_b32 v16, 16, v16
    v_lshlrev_b32 v9, 1, v8
    s_movk_i32 s23, {hex(SA64K_OFF)}
    buffer_store_short v16, v9, s[12:15], s23 offen""")
    a.label("K1_END")
    a("s_endpgm")
```

```python
from common import *
from asmlib import *
from gen_k1 import srd, tab_srd

K2_MAIN = 80
K2_WGU, K2_WD = 88, 43
K2_GRID = K2_MAIN + K2_WGU + K2_WD
L_TA, L_TS, L_TBF, L_TBI, L_TAI, L_TAB, L_CA, L_SA = 0, 8192, 16384, 18432, 20480, 22528, 24576, 26624
L_X1 = 28672
L_X2 = L_X1 + 32768
K2_LDS = L_X2 + 32 * 1088
K2_VGPR = 256

def k2(a):
    a.label("k2_kernel")
    a(f"""s_cmp_ge_u32 s2, {K2_GRID}
    s_cbranch_scc1 K2_END
    s_load_dwordx2 s[6:7], s[0:1], 88
    v_lshrrev_b32 v1, 6, v0
    v_and_b32 v2, 63, v0              ; lane
    s_nop 0
    v_readfirstlane_b32 s3, v1        ; wave
    s_cmp_ge_u32 s2, {K2_MAIN}
    s_cbranch_scc1 K2_SIDE
    s_and_b32 s20, s2, 7
    s_lshr_b32 s21, s2, 4
    s_lshl_b32 s21, s21, 3
    s_add_u32 s20, s20, s21           ; g
    s_cmp_gt_u32 s20, 32
    s_cbranch_scc1 K2_END
    s_bfe_u32 s21, s2, 0x10003        ; p""")
    tab_srd(a, 16, "TAB_K2", 2 * 24576)
    DATA, WFR, ANG, TS, TAS, TMP, CA, ACC = 16, 48, 64, 96, 128, 160, 192, 224
    a(f"""v_lshlrev_b32 v3, 4, v2           ; lane*16
    s_mul_i32 s22, s21, 24576
    s_mul_i32 s23, s3, 3072
    s_add_u32 s22, s22, s23
    s_mov_b32 m0, s23
    s_nop 0
    buffer_load_dwordx4 v3, s[16:19], s22 offen lds
    buffer_load_dwordx4 v3, s[16:19], s22 offen offset:1024 lds
    buffer_load_dwordx4 v3, s[16:19], s22 offen offset:2048 lds
    s_waitcnt lgkmcnt(0)""")
    srd(a, 12, 6, 7, WS_SIZE)
    a(f"""s_lshl_b32 s23, s3, 10
    s_add_u32 s24, s23, {hex(CA1K_OFF)}
    s_cmp_eq_u32 s3, 2
    s_cmov_b32 s24, {hex(SA64K_OFF)}
    s_add_u32 s23, s23, {L_CA}
    s_cmp_lt_u32 s3, 3
    s_cbranch_scc0 K2_NOCA
    s_mov_b32 m0, s23
    s_nop 0
    buffer_load_dwordx4 v3, s[12:15], s24 offen lds""")
    a.label("K2_NOCA")
    a(f"""v_and_b32 v4, 31, v0
    v_lshlrev_b32 v4, 5, v4
    v_bfe_u32 v5, v0, 5, 1            ; h
    v_lshl_add_u32 v4, v5, 4, v4
    v_lshl_add_u32 v4, v1, 13, v4
    s_and_b32 s24, s20, 31            ; slot
    s_lshl_b32 s25, s24, 16
    s_add_u32 s25, s25, {hex(ABUF_OFF)}      ; c=0 base
    s_add_u32 s26, s25, 2048                 ; c=1 base
    s_cmp_eq_u32 s20, 32
    s_cmov_b32 s25, s26
    s_cmp_eq_u32 s24, 0
    s_cmov_b32 s26, {hex(OOB)}
    s_add_u32 s27, s25, 4096
    s_add_u32 s28, s26, 4096""")
    for sg in range(2):
        for c in range(2):
            for u in range(2):
                d = DATA + 16 * sg + 4 * (2 * c + u)
                a(f"buffer_load_dwordx4 v[{d}:{d+3}], v4, s[12:15], s{25 + c + 2*sg} offen offset:{1024*u}")
    a(f"""v_lshl_add_u32 v6, v1, 12, v3
    s_lshl_b32 s29, s20, 16
    s_lshl_b32 s30, s21, 15
    s_add_u32 s29, s29, s30
    s_add_u32 s29, s29, {hex(WF_OFF)}""")
    for sg in range(2):
        for fr in range(2):
            d = WFR + 8 * sg + 4 * fr
            a(f"buffer_load_dwordx4 v[{d}:{d+3}], v6, s[12:15], s29 offen offset:{2048*sg+1024*fr}")
    a(f"""v_and_b32 v7, 15, v0              ; lam
    v_bfe_u32 v8, v0, 4, 1            ; q%2
    v_lshlrev_b32 v8, 4, v8
    v_lshl_add_u32 v8, v5, 2, v8      ; s2 base = 16(q%2)+4(q/2)
    v_mul_u32_u24 v9, s20, v8         ; s2base*g
    s_lshl_b32 s30, s3, 4             ; 8*2w
    v_mad_u32_u24 v9, v7, s30, v9     ; + 16 w lam
    v_lshlrev_b32 v10, 3, v7          ; 8 lam""")
    for sg in range(2):
        for rho in range(8):
            v, r = rho // 4, rho % 4
            cr = ANG + 16 * sg + rho; sr = cr + 8
            a(f"""s_mul_i32 s30, s20, {8*v + r}
            v_add_u32 v{cr}, s30, v9
            v_and_b32 v{cr}, 0x7ff, v{cr}
            v_cvt_f32_u32 v{cr}, v{cr}
            v_mul_f32 v{cr}, 0x3a000000, v{cr}
            v_sin_f32 v{sr}, v{cr}
            v_cos_f32 v{cr}, v{cr}""")
        if sg == 0: a("v_add_u32 v9, v9, v10")
    a(f"""v_bfe_u32 v9, v0, 4, 2            ; q
    v_bfe_u32 v10, v0, 2, 1           ; (lam/4)%2
    v_bfe_u32 v11, v0, 3, 1           ; lam/8
    v_and_b32 v12, 3, v0
    v_lshl_add_u32 v12, v10, 4, v12
    v_lshl_add_u32 v12, v11, 2, v12   ; nu(0,lam)
    v_lshlrev_b32 v12, 2, v12
    v_lshl_add_u32 v12, v9, 13, v12
    v_lshl_add_u32 v12, v1, 8, v12
    v_add_u32 v12, {L_X1}, v12
    v_and_b32 v13, 31, v0
    v_lshlrev_b32 v13, 2, v13
    v_lshl_add_u32 v13, v5, 9, v13
    v_lshl_add_u32 v13, v1, 12, v13
    v_add_u32 v13, {L_X1}, v13
    v_mul_u32_u24 v14, 1088, v8
    v_lshl_add_u32 v14, v1, 7, v14
    v_lshl_add_u32 v14, v7, 2, v14
    v_add_u32 v14, {L_X2}, v14
    v_lshl_add_u32 v15, v1, 2, v10    ; s2 = 4w + (i/4)%2
    v_mul_u32_u24 v15, 1088, v15
    v_lshl_add_u32 v15, v5, 8, v15    ; + 4h*16*4
    v_bfe_u32 v9, v0, 3, 2            ; i/8
    v_and_b32 v10, 3, v0
    v_lshl_add_u32 v9, v9, 2, v10     ; d1
    v_lshl_add_u32 v15, v9, 2, v15
    v_add_u32 v15, {L_X2}, v15
    v_lshlrev_b32 v9, 5, v5
    v_lshl_add_u32 v9, v1, 8, v9
    v_lshlrev_b32 v10, 4, v5
    v_lshl_add_u32 v10, v1, 7, v10
    s_waitcnt vmcnt(12)
    s_barrier""")
    for f in range(8):
        a(f"ds_read_b128 v[{TMP+4*f}:{TMP+4*f+3}], v3 offset:{L_TA + 1024*f}")
    for sg in range(2):
        for u in range(2):
            for z in range(2):
                d = CA + 16 * sg + 8 * u + 4 * z
                a(f"ds_read_b128 v[{d}:{d+3}], v9 offset:{L_CA + 128*sg + 64*u + 16*z}")
    a("s_waitcnt lgkmcnt(0)")
    for f in range(8):
        a(f"ds_read_b128 v[{TS+4*f}:{TS+4*f+3}], v3 offset:{L_TS + 1024*f}")
    for sg in range(2):
        for f in range(4):
            u = f % 2
            for e in range(0, 8, 2):
                t = ACC + 2 * ((f * 4 + e // 2) % 16)
                a(f"v_pk_mul_f32 v[{t}:{t+1}], v[{TMP+8*f+e}:{TMP+8*f+e+1}], v[{CA+16*sg+8*u+e}:{CA+16*sg+8*u+e+1}]")
                a(f"v_cvt_pk_bf16_f32 v{TAS+16*sg+4*f+e//2}, v{t}, v{t+1}")
    TBF, TBI, TAI, OP = TMP, TMP + 8, TMP + 16, TMP + 24
    for nm, off in ((TBF, L_TBF), (TBI, L_TBI), (TAI, L_TAI)):
        for v in range(2):
            a(f"ds_read_b128 v[{nm+4*v}:{nm+4*v+3}], v3 offset:{off + 1024*v}")
    acc = lambda sg: f"v[{ACC+16*sg}:{ACC+16*sg+15}]"
    for sg in range(2):
        a(f"s_waitcnt vmcnt({8 - 4*sg})")
        for f in range(4):
            d = DATA + 16 * sg + 4 * f; b = TAS + 16 * sg + 4 * f
            a(f"v_mfma_f32_32x32x16_bf16 {acc(sg)}, v[{d}:{d+3}], v[{b}:{b+3}], {'0' if f == 0 else acc(sg)}")
    a("""s_cmp_eq_u32 s20, 0
    s_cbranch_scc0 K2_NOSA""")
    SAr = CA + 8
    for sg in range(2):
        for u in range(2):
            d = SAr + 8 * sg + 4 * u
            a(f"ds_read_b128 v[{d}:{d+3}], v10 offset:{L_SA + 64*sg + 32*u}")
    for u in range(2):
        a(f"ds_read_b128 v[{SAr+16+4*u}:{SAr+16+4*u+3}], v3 offset:{L_TAB + 1024*u}")
    a("s_waitcnt lgkmcnt(0)")
    for sg in range(2):
        for u in range(2):
            d = SAr + 8 * sg + 4 * u
            a(f"v_mfma_f32_32x32x16_bf16 {acc(sg)}, v[{d}:{d+3}], v[{SAr+16+4*u}:{SAr+16+4*u+3}], {acc(sg)}")
    a.label("K2_NOSA")
    WU = DATA
    a("s_waitcnt vmcnt(0)")
    for sg in range(2):
        for pi in range(8):
            a(f"v_lshlrev_b32 v{WU+16*sg+2*pi}, 16, v{WFR+8*sg+pi}")
            a(f"v_and_b32 v{WU+16*sg+2*pi+1}, 0xffff0000, v{WFR+8*sg+pi}")
    T1 = TAS
    def twiddle(sg, re, im, rho, dst, tt):
        c = ANG + 16 * sg + rho; s = c + 8
        a(f"""v_mul_f32 v{tt}, v{re}, v{c}
        v_mul_f32 v{tt+1}, v{im}, v{c}
        v_fma_f32 v{tt}, v{im}, v{s}, v{tt}
        v_fma_f32 v{tt+1}, -v{re}, v{s}, v{tt+1}
        v_cvt_pk_bf16_f32 v{dst}, v{tt}, v{tt+1}""")
    a("s_nop 7")
    for sg in range(2):
        A0 = ACC + 16 * sg
        for rho in range(8): a(f"v_permlane16_swap_b32 v{A0+rho}, v{A0+8+rho}")
        for rho in range(8): twiddle(sg, A0 + rho, A0 + 8 + rho, rho, OP + 8 * sg + rho, T1 + 2 * rho)
        if sg == 0: a("s_waitcnt lgkmcnt(0)")
        for v in range(2):
            for tc in range(4):
                d = f"v[{A0+4*tc}:{A0+4*tc+3}]"
                a(f"v_mfma_f32_16x16x32_bf16 {d}, v[{OP+8*sg+4*v}:{OP+8*sg+4*v+3}], v[{TS+4*(2*tc+v)}:{TS+4*(2*tc+v)+3}], {'0' if v == 0 else d}")
    for sg in range(2):
        A0 = ACC + 16 * sg
        for t in range(2):
            for r in range(4):
                tt = T1 + 16 + 8 * sg + 4 * t + r
                a(f"v_cvt_pk_bf16_f32 v{tt}, v{A0+8*t+r}, v{A0+8*t+4+r}")
                a(f"ds_write_b32 v12, v{tt} offset:{2048*r + 32*t + 128*sg}")
    a(f"""v_add_u32 v4, 1024, v13
    v_add_u32 v6, 2048, v13
    v_add_u32 v7, 3072, v13
    s_waitcnt lgkmcnt(0)
    s_barrier""")
    ad = {(0, 0): 13, (0, 1): 4, (1, 0): 6, (1, 1): 7}
    for sg in range(2):
        for v in range(2):
            d = OP + 8 * sg + 4 * v
            a(f"ds_read2_b32 v[{d}:{d+1}], v{ad[(sg,v)]} offset0:0 offset1:32")
            a(f"ds_read2_b32 v[{d+2}:{d+3}], v{ad[(sg,v)]} offset0:64 offset1:96")
    for sg in range(2):
        for v in range(2):
            a(f"s_waitcnt lgkmcnt({6 - 4*sg - 2*v})")
            d = OP + 8 * sg + 4 * v
            a(f"v_mfma_f32_32x32x16_bf16 {acc(sg)}, v[{TBF+4*v}:{TBF+4*v+3}], v[{d}:{d+3}], {'0' if v == 0 else acc(sg)}")
    ACC2 = CA + 8 - 8
    acc2 = lambda sg: f"v[{ACC2+16*sg}:{ACC2+16*sg+15}]"
    OP2 = T1 + 16
    for sg in range(2):
        A0 = ACC + 16 * sg
        for pi in range(8):
            re, im = A0 + 2 * pi, A0 + 2 * pi + 1
            wr, wi = WU + 16 * sg + 2 * pi, WU + 16 * sg + 2 * pi + 1
            tt = T1 + 2 * pi
            a(f"""v_mul_f32 v{tt}, v{re}, v{wr}
            v_mul_f32 v{tt+1}, v{re}, v{wi}
            v_fma_f32 v{tt}, -v{im}, v{wi}, v{tt}
            v_fma_f32 v{tt+1}, v{im}, v{wr}, v{tt+1}
            v_cvt_pk_bf16_f32 v{OP2+8*sg+pi}, v{tt}, v{tt+1}""")
        for v in range(2):
            d = OP2 + 8 * sg + 4 * v
            a(f"v_mfma_f32_32x32x16_bf16 {acc2(sg)}, v[{d}:{d+3}], v[{TBI+4*v}:{TBI+4*v+3}], {'0' if v == 0 else acc2(sg)}")
    OP3 = DATA
    OP3 = WFR
    for sg in range(2):
        A2 = ACC2 + 16 * sg; A0 = ACC + 16 * sg
        for rho in range(8): a(f"v_permlane16_swap_b32 v{A2+rho}, v{A2+8+rho}")
        for rho in range(8): a(f"v_cvt_pk_bf16_f32 v{OP3+8*sg+rho}, v{A2+rho}, v{A2+8+rho}")
        for v in range(2):
            for tc in range(4):
                d = f"v[{A0+4*tc}:{A0+4*tc+3}]"
                a(f"v_mfma_f32_16x16x32_bf16 {d}, v[{TS+4*(2*tc+v)}:{TS+4*(2*tc+v)+3}], v[{OP3+8*sg+4*v}:{OP3+8*sg+4*v+3}], {'0' if v == 0 else d}")
    for sg in range(2):
        A0 = ACC + 16 * sg
        for t in range(2):
            for r in range(4):
                rho = 4 * t + r
                dst = OP + 8 * sg + rho
                twiddle(sg, A0 + 8 * t + r, A0 + 8 * t + 4 + r, rho, dst, T1 + 2 * rho)
                a(f"ds_write_b32 v14, v{dst} offset:{(8*t + r)*1088 + 64*sg}")
    a(f"""v_add_u32 v4, 2176, v15
    v_and_b32 v6, 15, v0
    v_lshlrev_b32 v6, 5, v6           ; d2*32
    v_lshl_add_u32 v6, v5, 16, v6     ; + h'*65536
    v_lshl_add_u32 v6, v1, 18, v6     ; + 4w*65536
    v_bfe_u32 v7, v0, 4, 1            ; c'
    s_movk_i32 s30, 512
    s_cmp_eq_u32 s24, 0
    s_cmov_b32 s30, {hex(OOB)}
    v_mul_lo_u32 v7, v7, s30
    v_add_u32 v6, v6, v7
    s_lshl_b32 s30, s24, 10
    s_cmp_eq_u32 s20, 32
    s_cmov_b32 s30, 512
    s_lshl_b32 s31, s21, 15
    s_add_u32 s30, s30, s31
    s_add_u32 s30, s30, {hex(VBUF_OFF)}
    s_add_u32 s31, s30, 0x20000
    s_waitcnt lgkmcnt(0)
    s_barrier""")
    ad = {0: 15, 1: 4}
    for sg in range(2):
        for v in range(2):
            d = OP2 + 8 * sg + 4 * v
            a(f"ds_read2_b32 v[{d}:{d+1}], v{ad[sg]} offset0:{128*v} offset1:{128*v+16}")
            a(f"ds_read2_b32 v[{d+2}:{d+3}], v{ad[sg]} offset0:{128*v+32} offset1:{128*v+48}")
    for sg in range(2):
        for v in range(2):
            a(f"s_waitcnt lgkmcnt({6 - 4*sg - 2*v})")
            d = OP2 + 8 * sg + 4 * v
            a(f"v_mfma_f32_32x32x16_bf16 {acc2(sg)}, v[{d}:{d+3}], v[{TAI+4*v}:{TAI+4*v+3}], {'0' if v == 0 else acc2(sg)}")
    for sg in range(2):
        A2 = ACC2 + 16 * sg
        for hf in range(2):
            pb = DATA + 8 * sg + 4 * hf
            for z in range(4):
                a(f"v_cvt_pk_bf16_f32 v{pb+z}, v{A2+8*hf+2*z}, v{A2+8*hf+2*z+1}")
            a(f"buffer_store_dwordx4 v[{pb}:{pb+3}], v6, s[12:15], s{30+sg} offen offset:{16*hf}")
    a("s_endpgm")
    a.label("K2_SIDE")
    a(f"""s_sub_u32 s20, s2, {K2_MAIN}
    v_lshrrev_b32 v3, 4, v2           ; q
    v_and_b32 v4, 15, v2              ; lam
    v_and_b32 v5, 3, v2               ; lam%4
    v_bfe_u32 v6, v2, 2, 2            ; lam/4
    s_cmp_ge_u32 s20, {K2_WGU}
    s_cbranch_scc1 K2_WD
    s_and_b32 s21, s20, 1             ; kh
    s_bfe_u32 s22, s20, 0x10001       ; gu
    s_lshr_b32 s23, s20, 2            ; G
    s_lshl_b32 s24, s22, 3
    s_add_u32 s24, s24, 32
    s_load_dwordx2 s[4:5], s[0:1], s24
    s_lshl_b32 s21, s21, 3
    s_add_u32 s21, s21, s3            ; ks
    s_mul_i32 s25, s21, {32*2752}
    s_lshl_b32 s26, s23, 7
    s_add_u32 s25, s25, s26
    v_mul_u32_u24 v7, {8*2752}, v3
    v_lshl_add_u32 v7, v4, 3, v7""")
    for e in range(8):
        a(f"s_add_u32 s{32+e}, s25, {e*2752}")
    a(f"""s_mov_b32 s10, {512*2752}
    v_lshlrev_b32 v8, 15, v6
    v_lshl_add_u32 v8, v3, 8, v8
    v_lshl_add_u32 v8, v5, 6, v8
    s_lshl_b32 s26, s23, 17
    s_lshl_b32 s27, s22, 14
    s_add_u32 s26, s26, s27
    s_lshl_b32 s27, s21, 10
    s_add_u32 s26, s26, s27
    s_add_u32 s26, s26, {hex(WGU_OFF)}
    s_branch K2_PACK""")
    a.label("K2_WD")
    a(f"""s_load_dwordx2 s[4:5], s[0:1], 48
    s_sub_u32 s21, s20, {K2_WGU}      ; ks
    s_lshl_b32 s25, s21, 15
    s_lshl_b32 s26, s3, 7
    s_add_u32 s25, s25, s26
    v_lshlrev_b32 v7, 12, v3
    v_lshl_add_u32 v7, v4, 3, v7""")
    for e in range(8):
        a(f"s_add_u32 s{32+e}, s25, {(16*(e//4) + e%4)*1024}")
    a(f"""s_mov_b32 s10, {1376*1024}
    v_lshlrev_b32 v8, 10, v5
    v_lshl_add_u32 v8, v3, 8, v8
    v_lshl_add_u32 v8, v6, 6, v8
    s_mul_i32 s26, s3, {43*4096}
    s_lshl_b32 s27, s21, 12
    s_add_u32 s26, s26, s27
    s_add_u32 s26, s26, {hex(WD_OFF)}""")
    a.label("K2_PACK")
    a(f"""s_waitcnt lgkmcnt(0)
    s_mov_b32 s8, s4
    s_mov_b32 s9, s5
    s_mov_b32 s11, 0x00020000""")
    srd(a, 12, 6, 7, WS_SIZE)
    for e in range(8):
        a(f"buffer_load_dwordx2 v[{16+2*e}:{17+2*e}], v7, s[8:11], s{32+e} offen")
    a("""s_mov_b32 s41, 0x05040100
    s_mov_b32 s42, 0x07060302
    s_waitcnt vmcnt(0)""")
    for tau in range(4):
        for ep in range(4):
            a(f"v_perm_b32 v{32+4*tau+ep}, v{16+2*(2*ep+1)+tau//2}, v{16+2*(2*ep)+tau//2}, s{41+tau%2}")
        a(f"buffer_store_dwordx4 v[{32+4*tau}:{35+4*tau}], v8, s[12:15], s26 offen offset:{16*tau}")
    a.label("K2_END")
    a("s_endpgm")
```

```python
from common import *
from asmlib import *
from gen_k1 import srd, tab_srd

K3_BLOCK = 512
L_G1, L_MOD, L_ST = 65536, 73728, 79872
K3_LDS = L_ST + 4096
K3_VGPR = 256
K3_ACC = 256

class VM:
    def __init__(self): self.ops = []
    def issue(self, tag): self.ops.append(tag)
    def wait(self, a, tag):
        last = max(i for i, t in enumerate(self.ops) if t == tag)
        n = len(self.ops) - 1 - last
        a(f"s_waitcnt vmcnt({min(n, 63)})")
    def copy(self):
        v = VM(); v.ops = list(self.ops); return v

def k3(a):
    a.label("k3_kernel")
    XR, ACC, FR, E = 16, 48, 112, 160
    a(f"""s_cmp_ge_u32 s2, 256
    s_cbranch_scc1 K3_END
    s_load_dwordx2 s[4:5], s[0:1], 0
    s_load_dwordx2 s[6:7], s[0:1], 88
    v_lshrrev_b32 v1, 6, v0
    v_and_b32 v2, 63, v0              ; lane
    v_lshlrev_b32 v3, 4, v2           ; lane*16
    v_readfirstlane_b32 s3, v1        ; wave
    s_and_b32 s20, s2, 3
    s_bfe_u32 s21, s2, 0x30003
    s_lshl_b32 s21, s21, 2
    s_add_u32 s20, s20, s21
    s_bfe_u32 s21, s2, 0x10002
    s_lshr_b32 s22, s2, 6
    s_lshl_b32 s22, s22, 1
    s_add_u32 s21, s21, s22           ; s21 = f
    v_and_b32 v4, 3, v2
    v_lshlrev_b32 v4, 9, v4
    v_lshrrev_b32 v5, 2, v2
    v_lshl_add_u32 v4, v5, 4, v4
    s_lshl_b32 s22, s20, 16
    s_lshl_b32 s23, s3, 13
    s_add_u32 s22, s22, s23
    s_add_u32 s22, s22, {hex(VBUF_OFF)}
    s_sub_u32 s24, s22, 768
    s_add_u32 s25, s22, 4096
    s_add_u32 s26, s24, 4096
    s_mov_b32 m0, s23
    s_waitcnt lgkmcnt(0)""")
    srd(a, 12, 6, 7, WS_SIZE)
    vm = VM()
    for grp in range(2):
        if grp == 1: a("s_add_u32 s23, s23, 4096\ns_mov_b32 m0, s23")
        for i in range(4):
            so = (22 if i % 2 == 0 else 24) if grp == 0 else (25 if i % 2 == 0 else 26)
            a(f"buffer_load_dwordx4 v4, s[12:15], s{so} offen offset:{1024*i} lds"); vm.issue("dma")
    tab_srd(a, 16, "TAB_G1", 8192)
    srd(a, 8, 4, 5, 2048 * 1024)
    a(f"""s_lshl_b32 s23, s3, 10
    s_add_u32 s24, s23, {L_G1}
    s_mov_b32 m0, s24
    s_add_u32 s25, s23, 4096
    buffer_load_dwordx4 v3, s[16:19], s23 offen lds
    s_add_u32 s24, s23, {L_MOD}
    s_cmp_lt_u32 s3, 6
    s_cbranch_scc0 K3_NOMOD
    s_mov_b32 m0, s24
    s_nop 0
    buffer_load_dwordx4 v3, s[12:15], s25 offen lds""")
    vm.issue("dma")
    a.label("K3_NOMOD")
    a(f"""v_and_b32 v5, 31, v0              ; j
    v_bfe_u32 v6, v0, 5, 1            ; h'
    v_lshlrev_b32 v7, 15, v5
    v_lshl_add_u32 v7, v6, 5, v7
    v_lshl_add_u32 v7, v1, 6, v7      ; x voff
    s_lshl_b32 s26, s20, 10
    s_add_u32 s27, s26, 0x100000""")
    for st in range(2):
        for pm in range(2):
            for z in range(2):
                d = XR + 16 * st + 8 * pm + 4 * z
                a(f"buffer_load_dwordx4 v[{d}:{d+3}], v7, s[8:11], s{26+st} offen offset:{512*pm+16*z}"); vm.issue("x")
    a(f"""s_mul_i32 s28, s21, 11
    s_cmp_eq_u32 s21, 7
    s_subb_u32 s28, s28, 0            ; ft0
    s_add_u32 s28, s28, s3            ; ftA
    s_add_u32 s29, s28, 8             ; ftB
    s_lshl_b32 s30, s28, 15
    s_add_u32 s30, s30, {hex(WGU_OFF)}""")
    for t in range(2):
        for gu in range(2):
            for kb in range(4):
                a(f"s_add_u32 s{32+8*t+4*gu+kb}, s30, {t*8*32768 + gu*16384 + kb*4096}")
    a("""s_cmp_ge_u32 s21, 6
    s_cselect_b32 s31, 2, 3
    s_cmp_lt_u32 s3, s31
    s_cselect_b32 s31, 1, 0
    s_cbranch_scc0 K3_E1""")
    late = list(range(XR, ACC, 16)) + [FR + 32]
    def slots(nt):
        sz = 8 * nt
        s = list(range(E, 256, sz))
        ne = len(s)
        for b in late:
            s += list(range(b, b + 16, sz))
        return s, ne
    def wload(nt, ks, reg, vmx):
        for t in range(nt):
            for gu in range(2):
                d = reg + 8 * t + 4 * gu
                a(f"buffer_load_dwordx4 v[{d}:{d+3}], v3, s[12:15], s{32+8*t+4*gu+ks//4} offen offset:{1024*(ks%4)}")
                vmx.issue(("w", ks))
    vms = {}
    for nt in (2, 1):
        if nt == 1: a.label("K3_E1")
        s, ne = slots(nt)
        vx = vm.copy()
        for ks in range(ne): wload(nt, ks, s[ks], vx)
        vms[nt] = vx
        if nt == 2: a("s_branch K3_E2")
    a.label("K3_E2")
    assert len(vms[1].ops) == len(vms[2].ops)
    a(f"""v_and_b32 v8, 3, v0               ; c
    v_bfe_u32 v9, v0, 2, 2            ; rr
    v_bfe_u32 v10, v0, 4, 1           ; G%2 = ic/4
    v_and_b32 v11, 1, v8              ; ic%2
    v_lshl_add_u32 v10, v11, 1, v10
    v_lshl_add_u32 v10, v1, 2, v10    ; chunk
    v_lshlrev_b32 v10, 6, v10
    v_lshl_add_u32 v10, v9, 4, v10
    v_lshrrev_b32 v8, 1, v8           ; (ic/2)%2
    v_lshl_add_u32 v10, v8, 3, v10
    v_lshl_add_u32 v8, v6, 12, v10
    v_lshlrev_b32 v9, 6, v6
    v_lshl_add_u32 v9, v1, 7, v9
    v_lshlrev_b32 v10, 3, v2
    v_lshl_add_u32 v11, v1, 9, v10
    v_bfe_u32 v12, v0, 4, 1
    v_lshlrev_b32 v12, 14, v12
    v_lshl_add_u32 v12, v1, 10, v12
    v_lshl_add_u32 v12, v6, 9, v12
    v_and_b32 v13, 15, v0
    v_lshl_add_u32 v12, v13, 4, v12
    v_mov_b32 v13, 0x3f803f80""")
    vms[2].wait(a, "dma")
    a("s_barrier")
    acc = lambda p, st: f"v[{ACC+32*st+16*p}:{ACC+32*st+16*p+15}]"
    def rd(ks):
        b = FR + 16 * (ks % 3)
        for p in range(2):
            for hf in range(2):
                a(f"ds_read_b64_tr_b16 v[{b+4*p+2*hf}:{b+4*p+2*hf+1}], v8 offset:{32768*p + 8192*ks + 2048*hf}")
        for st in range(2):
            a(f"ds_read_b128 v[{b+8+4*st}:{b+8+4*st+3}], v3 offset:{L_G1 - 65536 + 1024*(4*st+ks) + 65536}" if False else
              f"ds_read_b128 v[{b+8+4*st}:{b+8+4*st+3}], v14 offset:{1024*(4*st+ks)}")
    a(f"v_add_u32 v14, {L_G1}, v3\nv_add_u32 v9, {L_MOD}, v9\nv_add_u32 v10, {L_ST}, v10\nv_add_u32 v11, {L_ST}, v11")
    rd(0); rd(1); rd(2)
    for ks in range(4):
        a(f"s_waitcnt lgkmcnt({[12, 12, 6+8, 8][ks] if False else 0})" if False else f"s_waitcnt lgkmcnt({(12, 12, 6, 0)[ks]})")
        b = FR + 16 * (ks % 3)
        for st in range(2):
            for p in range(2):
                a(f"v_mfma_f32_32x32x16_bf16 {acc(p, st)}, v[{b+4*p}:{b+4*p+3}], v[{b+8+4*st}:{b+8+4*st+3}], {'0' if ks == 0 else acc(p, st)}")
        if ks == 0: rd(3)
    GA = FR + 16
    for pm in range(2):
        for z in range(4):
            a(f"ds_read_b128 v[{GA+16*pm+4*z}:{GA+16*pm+4*z+3}], v9 offset:{1024*pm + 16*z}")
    vms[2].wait(a, "x")
    a("s_waitcnt lgkmcnt(0)")
    T = FR
    a("v_mov_b32 v4, 0\nv_mov_b32 v5, 0\nv_mov_b32 v14, 0\nv_mov_b32 v15, 0")
    S = {0: (4, 5), 1: (14, 15)}
    for st in range(2):
        for k in range(8):
            a0 = ACC + 32 * st + 2 * k; a1 = a0 + 16
            xp = XR + 16 * st + k; xm = xp + 8
            t = T + 8 * (k % 2)
            a(f"""v_lshlrev_b32 v{t}, 16, v{xp}
            v_and_b32 v{t+1}, 0xffff0000, v{xp}
            v_lshlrev_b32 v{t+2}, 16, v{xm}
            v_and_b32 v{t+3}, 0xffff0000, v{xm}
            v_pk_add_f32 v[{t+4}:{t+5}], v[{a0}:{a0+1}], v[{a1}:{a1+1}]
            v_pk_add_f32 v[{t+6}:{t+7}], v[{a0}:{a0+1}], v[{a1}:{a1+1}] neg_lo:[0,1] neg_hi:[0,1]
            v_pk_fma_f32 v[{a0}:{a0+1}], v[{t+4}:{t+5}], v[{GA+2*k}:{GA+2*k+1}], v[{t}:{t+1}]
            v_pk_fma_f32 v[{a1}:{a1+1}], v[{t+6}:{t+7}], v[{GA+16+2*k}:{GA+16+2*k+1}], v[{t+2}:{t+3}]
            v_cvt_pk_bf16_f32 v{xp}, v{a0}, v{a0+1}
            v_cvt_pk_bf16_f32 v{xm}, v{a1}, v{a1+1}
            v_dot2c_f32_bf16 v{S[st][0]}, v{xp}, v13
            v_dot2c_f32_bf16 v{S[st][1]}, v{xp}, v{xp}
            v_dot2c_f32_bf16 v{S[st][0]}, v{xm}, v13
            v_dot2c_f32_bf16 v{S[st][1]}, v{xm}, v{xm}""")
    a(f"""v_permlane32_swap_b32 v4, v14
    v_permlane32_swap_b32 v5, v15
    v_add_f32 v4, v4, v14
    v_add_f32 v5, v5, v15
    ds_write_b64 v11, v[4:5]""")
    a(f"""s_cmp_eq_u32 s3, s21
    s_cbranch_scc0 K3_NOXN
    s_add_u32 s26, s26, {hex(XN_OFF)}
    s_add_u32 s27, s27, {hex(XN_OFF)}""")
    for st in range(2):
        for pm in range(2):
            for z in range(2):
                d = XR + 16 * st + 8 * pm + 4 * z
                a(f"buffer_store_dwordx4 v[{d}:{d+3}], v7, s[12:15], s{26+st} offen offset:{512*pm+16*z}")
    a.label("K3_NOXN")
    CB, SB = FR + 16, FR + 32
    def rdp(pm):
        for z in range(4):
            a(f"ds_read_b128 v[{CB+4*z}:{CB+4*z+3}], v9 offset:{4096 + 1024*pm + 16*z}")
            a(f"ds_read_b128 v[{SB+4*z}:{SB+4*z+3}], v9 offset:{2048 + 1024*pm + 16*z}")
    rdp(0)
    a("s_waitcnt lgkmcnt(8)\ns_barrier")
    for w in range(8):
        a(f"ds_read_b64 v[{T+2*w}:{T+2*w+1}], v10 offset:{512*w}")
    a(f"""s_waitcnt lgkmcnt(0)
    v_pk_add_f32 v[{T}:{T+1}], v[{T}:{T+1}], v[{T+2}:{T+3}]
    v_pk_add_f32 v[{T+4}:{T+5}], v[{T+4}:{T+5}], v[{T+6}:{T+7}]
    v_pk_add_f32 v[{T+8}:{T+9}], v[{T+8}:{T+9}], v[{T+10}:{T+11}]
    v_pk_add_f32 v[{T+12}:{T+13}], v[{T+12}:{T+13}], v[{T+14}:{T+15}]
    v_pk_add_f32 v[{T}:{T+1}], v[{T}:{T+1}], v[{T+4}:{T+5}]
    v_pk_add_f32 v[{T+8}:{T+9}], v[{T+8}:{T+9}], v[{T+12}:{T+13}]
    v_pk_add_f32 v[{T}:{T+1}], v[{T}:{T+1}], v[{T+8}:{T+9}]
    v_mul_f32 v4, 0x3b000000, v{T}
    v_mul_f32 v5, 0x3b000000, v{T+1}
    v_fma_f32 v5, -v4, v4, v5
    v_max_f32 v5, 0, v5
    v_cvt_pk_bf16_f32 v14, v4, v5
    v_lshlrev_b32 v4, 16, v14
    v_and_b32 v5, 0xffff0000, v14
    v_add_f32 v5, 0x3727c5ac, v5
    v_cvt_pk_bf16_f32 v5, v5, v5
    v_lshlrev_b32 v5, 16, v5
    v_sqrt_f32 v5, v5
    v_cvt_pk_bf16_f32 v5, v5, v5
    v_lshlrev_b32 v5, 16, v5
    v_rcp_f32 v5, v5
    v_mul_f32 v4, v4, v5
    v_sub_f32 v4, 0, v4               ; -m*rstd
    v_mov_b32 v14, v4
    v_mov_b32 v15, v5
    v_permlane32_swap_b32 v4, v14
    v_permlane32_swap_b32 v5, v15""")
    for pm in range(2):
        for st in range(2):
            sp = "v[4:5]" if st == 0 else "v[14:15]"
            for z in range(2):
                ob = T + 4 * ((2 * st + z) % 4)
                for k in range(4):
                    kk = 4 * z + k
                    ar = ACC + 32 * st + 16 * pm + 2 * kk
                    a(f"""v_pk_fma_f32 v[{ar}:{ar+1}], v[{ar}:{ar+1}], {sp}, {sp} op_sel:[0,1,0] op_sel_hi:[1,1,0]
                    v_pk_fma_f32 v[{ar}:{ar+1}], v[{ar}:{ar+1}], v[{CB+2*kk}:{CB+2*kk+1}], v[{SB+2*kk}:{SB+2*kk+1}]
                    v_cvt_pk_bf16_f32 v{ob+k}, v{ar}, v{ar+1}""")
                a(f"ds_write_b128 v12, v[{ob}:{ob+3}] offset:{32768*st + 8192*pm + 256*z}")
        if pm == 0:
            rdp(1); a("s_waitcnt lgkmcnt(0)")
    a(f"""s_mul_i32 s22, s20, {43*4096}
    s_add_u32 s22, s22, {hex(HM_OFF)}
    s_lshr_b32 s23, s28, 1
    s_lshl_b32 s23, s23, 12
    s_and_b32 s24, s28, 1
    s_lshl_b32 s24, s24, 3
    s_add_u32 s22, s22, s23
    s_add_u32 s22, s22, s24
    s_add_u32 s23, s22, 0x4000
    v_add_u32 v4, 0x8000, v3
    s_cmp_eq_u32 s31, 1
    s_waitcnt lgkmcnt(0)
    s_barrier
    s_cbranch_scc0 K3_M1""")
    BF = FR
    for nt in (2, 1):
        if nt == 1: a.label("K3_M1")
        s, ne = slots(nt)
        vx = vms[nt]
        ns = len(s)
        nxt = ne
        def rdb(ks):
            b = BF + 16 * (ks % 2)
            for mt in range(4):
                a(f"ds_read_b128 v[{b+4*mt}:{b+4*mt+3}], v{3 if mt < 2 else 4} offset:{16384*(mt%2) + 1024*ks}")
        rdb(0)
        while nxt < min(ns, 16):
            wload(nt, nxt, s[nxt], vx); nxt += 1
        for ks in range(16):
            if ks < 15: rdb(ks + 1)
            vx.wait(a, ("w", ks))
            a(f"s_waitcnt lgkmcnt({4 if ks < 15 else 0})")
            b = BF + 16 * (ks % 2); wr = s[ks % ns]
            for mt in range(4):
                for t in range(nt):
                    for gu in range(2):
                        d = ACC + 32 * t + 16 * gu + 4 * mt
                        w_ = wr + 8 * t + 4 * gu
                        a(f"v_mfma_f32_16x16x32_bf16 v[{d}:{d+3}], v[{w_}:{w_+3}], v[{b+4*mt}:{b+4*mt+3}], {'0' if ks == 0 else f'v[{d}:{d+3}]'}")
            if nxt < 16:
                wload(nt, nxt, s[nxt % ns], vx); nxt += 1
        for t in range(nt):
            for mt in range(4):
                g = ACC + 32 * t + 4 * mt; u = g + 16
                o = E + 2 * (4 * t + mt)
                a(f"""v_pk_mul_f32 v[{g}:{g+1}], v[{g}:{g+1}], v[{u}:{u+1}]
                v_pk_mul_f32 v[{g+2}:{g+3}], v[{g+2}:{g+3}], v[{u+2}:{u+3}]
                v_cvt_pk_bf16_f32 v{o}, v{g}, v{g+1}
                v_cvt_pk_bf16_f32 v{o+1}, v{g+2}, v{g+3}
                buffer_store_dwordx2 v[{o}:{o+1}], v3, s[12:15], s{22+t} offen offset:{1024*mt}""")
        a("s_endpgm")
    a.label("K3_END")
    a("s_endpgm")
```

```python
from common import *
from asmlib import *
from gen_k1 import srd
from gen_k3 import VM

K4_BLOCK = 256
K4_LDS = 4 * 3 * 4096
K4_VGPR = 512
K4_ACC = 256
NKS = 11
DEPTH = 7
def reg(r, n):
    return f"v[{r}:{r+n-1}]" if r < 256 else f"a[{r-256}:{r-256+n-1}]"
def k4(a):
    a.label("k4_kernel")
    ACC = 32
    RING = 96
    a(f"""s_cmp_ge_u32 s2, 256
    s_cbranch_scc1 K4_END
    s_load_dwordx2 s[4:5], s[0:1], 72
    s_load_dwordx2 s[6:7], s[0:1], 88
    v_lshrrev_b32 v1, 6, v0
    v_and_b32 v2, 63, v0
    v_lshlrev_b32 v3, 4, v2
    v_readfirstlane_b32 s3, v1        ; kq
    s_and_b32 s20, s2, 7
    s_lshr_b32 s21, s2, 6
    s_lshl_b32 s21, s21, 3
    s_add_u32 s20, s20, s21           ; m
    s_bfe_u32 s21, s2, 0x30003        ; nt
    s_mul_i32 s22, s3, {NKS*4096}
    s_mul_i32 s23, s20, {43*4096}
    s_add_u32 s23, s23, s22
    s_add_u32 s23, s23, {hex(HM_OFF)}
    s_mul_i32 s24, s21, {43*4096}
    s_add_u32 s24, s24, s22
    s_add_u32 s24, s24, {hex(WD_OFF)}""")
    for mu in range(4):
        a(f"""s_add_u32 s25, s3, {mu}
        s_and_b32 s25, s25, 3
        s_lshl_b32 s25, s25, 10
        v_add_u32 v{4+mu}, s25, v3""")
    a("s_waitcnt lgkmcnt(0)")
    srd(a, 12, 6, 7, WS_SIZE)
    srd(a, 8, 4, 5, 2048 * 1024)
    vm = VM()
    def load(i):
        b = RING + 32 * i
        if i == NKS - 1:
            a(f"""s_cmp_eq_u32 s3, 3
            s_cmov_b32 s23, {hex(OOB)}
            s_cmov_b32 s24, {hex(OOB)}""")
        for t in range(4):
            a(f"buffer_load_dwordx4 {reg(b+4*t, 4)}, v3, s[12:15], s24 offen offset:{1024*t}"); vm.issue(i)
            a(f"buffer_load_dwordx4 {reg(b+16+4*t, 4)}, v{4+t}, s[12:15], s23 offen"); vm.issue(i)
        a("s_add_u32 s23, s23, 4096\ns_add_u32 s24, s24, 4096")
    for i in range(DEPTH): load(i)
    a(f"""v_and_b32 v8, 15, v0
    v_lshl_add_u32 v8, v1, 4, v8      ; s1
    v_lshlrev_b32 v8, 15, v8
    v_bfe_u32 v9, v0, 4, 2            ; q
    v_lshl_add_u32 v8, v9, 5, v8
    s_lshl_b32 s26, s20, 10
    s_lshl_b32 s27, s21, 7
    s_add_u32 s26, s26, s27
    s_add_u32 s27, s26, {hex(XN_OFF)}
    v_lshlrev_b32 v9, 6, v9
    s_lshl_b32 s28, s21, 8
    s_add_u32 s28, s28, {5*2048}""")
    for i in range(NKS):
        vm.wait(a, i)
        b = RING + 32 * i
        for mu in range(4):
            for t in range(4):
                d = ACC + 16 * mu + 4 * t
                a(f"v_mfma_f32_16x16x32_bf16 v[{d}:{d+3}], {reg(b+4*t, 4)}, {reg(b+16+4*mu, 4)}, {'0' if i == 0 else f'v[{d}:{d+3}]'}")
        if i + DEPTH < NKS: load(i + DEPTH)
        if i + DEPTH == NKS:
            XN, GB = 448, 456
            for z in range(2):
                a(f"buffer_load_dwordx4 v[{10+4*z+2}:{10+4*z+5}], v8, s[12:15], s27 offen offset:{16*z}"); vm.issue("e")
            for z in range(4):
                a(f"buffer_load_dwordx4 v[{RING+4*z}:{RING+4*z+3}], v9, s[12:15], s28 offen offset:{16*z}"); vm.issue("e")
    for mu in range(1, 4):
        a(f"""s_add_u32 s25, s3, {mu}
        s_and_b32 s25, s25, 3
        s_mul_i32 s25, s25, 12288
        v_add_u32 v{4+mu}, s25, v3""")
    for mu in range(1, 4):
        for t in range(4):
            d = ACC + 16 * mu + 4 * t
            a(f"ds_write_b128 v{4+mu}, v[{d}:{d+3}] offset:{(mu-1)*4096 + 1024*t}")
    a(f"""s_mul_i32 s25, s3, 12288
    v_add_u32 v4, s25, v3
    s_waitcnt lgkmcnt(0)
    s_barrier""")
    R2 = RING + 32
    for k in range(12):
        a(f"ds_read_b128 v[{R2+4*k}:{R2+4*k+3}], v4 offset:{1024*k}")
    a("s_waitcnt vmcnt(0)")
    XU = R2 + 48
    for k in range(8):
        a(f"v_lshlrev_b32 v{XU+2*k}, 16, v{12+k}\nv_and_b32 v{XU+2*k+1}, 0xffff0000, v{12+k}")
    a("s_waitcnt lgkmcnt(0)")
    for k in range(8):
        d = ACC + 2 * k
        a(f"""v_pk_add_f32 v[{d}:{d+1}], v[{d}:{d+1}], v[{R2+2*k}:{R2+2*k+1}]
        v_pk_add_f32 v[{R2+16+2*k}:{R2+16+2*k+1}], v[{R2+16+2*k}:{R2+16+2*k+1}], v[{R2+32+2*k}:{R2+32+2*k+1}]
        v_pk_add_f32 v[{d}:{d+1}], v[{d}:{d+1}], v[{R2+16+2*k}:{R2+16+2*k+1}]
        v_pk_fma_f32 v[{d}:{d+1}], v[{d}:{d+1}], v[{RING+2*k}:{RING+2*k+1}], v[{XU+2*k}:{XU+2*k+1}]
        v_cvt_pk_bf16_f32 v{20+k}, v{d}, v{d+1}""")
    a("""buffer_store_dwordx4 v[20:23], v8, s[8:11], s26 offen
    buffer_store_dwordx4 v[24:27], v8, s[8:11], s26 offen offset:16""")
    a.label("K4_END")
    a("s_endpgm")
```

```python
import sys
from common import *
from asmlib import *
import gen_k1
HEAD = open("adaLN_cond__spectral_gfnet__glu_gated_bilinear__prompt.s.ref").read().split("; Override launch")[0]
def desc(name, vgpr, sgpr=102, accum=None):
    accum = accum or ((vgpr + 3) // 4 * 4)
    return f""".p2align 6
.amdhsa_kernel {name}
  .amdhsa_next_free_vgpr {vgpr}
  .amdhsa_next_free_sgpr {sgpr}
  .amdhsa_accum_offset {accum}
  .amdhsa_group_segment_fixed_size 0
  .amdhsa_kernarg_size 96
  .amdhsa_user_sgpr_count 2
  .amdhsa_user_sgpr_kernarg_segment_ptr 1
  .amdhsa_system_sgpr_workgroup_id_x 1
.end_amdhsa_kernel
"""
def build(kernels, path):
    out = HEAD
    for (name, fn, grid, block, lds, vgpr, accum) in kernels:
        out += f"; @launch kernel={name} grid=({grid},1,1) block=({block},1,1) lds={lds}\n"
    out += '.amdgcn_target "amdgcn-amd-amdhsa--gfx950"\n.text\n'
    seen = set()
    for (name, fn, grid, block, lds, vgpr, accum) in kernels:
        if name in seen: continue
        seen.add(name)
        a = Asm(); fn(a)
        out += f".globl {name}\n.p2align 8\n.type {name},@function\n" + a.text()
    out += '.section .rodata,"a"\n'
    seen = set()
    for (name, fn, grid, block, lds, vgpr, accum) in kernels:
        if name in seen: continue
        seen.add(name)
        out += desc(name, vgpr, 102, accum)
    out += tables()
    open(path, "w").write(out)
def tables():
    t = ".p2align 8\nTAB_F1:\n" + longs(tab_F1()) + "\n"
    t += ".p2align 8\nTAB_G1:\n" + longs(tab_G1()) + "\n"
    t += ".p2align 8\nTAB_K2:\n"
    for p in range(2):
        ta = tab_TA(p)
        ta2 = ta.reshape(4, 64, 2, 4).transpose(0, 2, 1, 3)
        t += longs(ta2) + "\n" + longs(tab_TS()) + "\n" + longs(tab_TBf(p)) + "\n" + longs(tab_TBi(p)) + "\n" + longs(tab_TAi(p)) + "\n" + longs(f2bf(ta[:2])) + "\n"
    return t
KERNELS = [("k1_kernel", gen_k1.k1, gen_k1.K1_GRID, 256, gen_k1.K1_LDS, 120, None)]
try:
    import gen_k2
    KERNELS.append(("k2_kernel", gen_k2.k2, gen_k2.K2_GRID, 512, gen_k2.K2_LDS, gen_k2.K2_VGPR, None))
    import gen_k3
    KERNELS.append(("k3_kernel", gen_k3.k3, 256, gen_k3.K3_BLOCK, gen_k3.K3_LDS, gen_k3.K3_VGPR, gen_k3.K3_ACC))
    import gen_k4
    KERNELS.append(("k4_kernel", gen_k4.k4, 256, gen_k4.K4_BLOCK, gen_k4.K4_LDS, gen_k4.K4_VGPR, gen_k4.K4_ACC))
except ImportError as e:
    print("partial build:", e)
if __name__ == "__main__":
    path = sys.argv[1] if len(sys.argv) > 1 else "kern.s"
    if "stamp" in path: Asm.STAMP = True
    build(KERNELS, path)
```

```python
import re
class Asm:
    def __init__(self):
        self.lines = []
    def __call__(self, s):
        for ln in s.strip("\n").split("\n"):
            ln = ln.strip()
            if ln: self.lines.append(ln)
    def label(self, name): self.lines.append(name + ":")
    def comment(self, s): self.lines.append("; " + s)
    STAMP = False
    def stamp(self, i, real=False):
        if not Asm.STAMP: return
        self(f"{'s_memrealtime' if real else 's_memtime'} s[{64+2*i}:{65+2*i}]\ns_waitcnt lgkmcnt(0)")
    def stamp_end(self, kern, nwaves, n=16, wavereg="s3"):
        if not Asm.STAMP: return
        self.stamp(14); self.stamp(15, real=True)
        self(f"s_mul_i32 s60, s2, {nwaves}\ns_add_u32 s60, s60, {wavereg}\ns_lshl_b32 s60, s60, 7\ns_add_u32 s60, s60, {hex(0x1800000 + kern*0x100000)}\ns_mov_b64 exec, 1\nv_mov_b32 v0, 0")
        for i in range(0, 2 * n, 4):
            self("\n".join(f"v_mov_b32 v{4+j}, s{64+i+j}" for j in range(4)))
            self(f"buffer_store_dwordx4 v[4:7], v0, s[12:15], s60 offen offset:{4*i}\ns_nop 1")
    def text(self):
        return "\n".join(fix_hazards(self.lines)) + "\n"

_REG = re.compile(r"^(-|abs\()?([vas])(?:(\d+)|\[(\d+):(\d+)\])\)?$")
def regs(op):
    op = op.strip()
    if op == "vcc": return {("s", 106), ("s", 107)}
    if op == "exec": return {("s", 126), ("s", 127)}
    if op == "m0": return {("s", 124)}
    m = _REG.match(op)
    if not m: return set()
    k = m.group(2)
    if m.group(3) is not None: return {(k, int(m.group(3)))}
    return {(k, i) for i in range(int(m.group(4)), int(m.group(5)) + 1)}
TRANS = ("v_exp_f32", "v_log_f32", "v_rcp_f32", "v_rsq_f32", "v_sqrt_f32", "v_sin_f32", "v_cos_f32")
class Ins:
    pass
def parse(line):
    code = line.split(";")[0].strip()
    if not code or code.endswith(":") or code.startswith("."): return None
    parts = code.split(None, 1)
    mn = parts[0]
    rest = parts[1] if len(parts) > 1 else ""
    ops = [o.strip() for o in re.split(r",(?![^\[]*\])", rest)] if rest else []
    mods = ""
    if ops:
        sp = ops[-1].split(None, 1)
        ops[-1] = sp[0]
        if len(sp) > 1: mods = sp[1]
    I = Ins(); I.mn = mn; I.ops = ops; I.mods = mods; I.line = line
    I.w = set(); I.r = set(); I.kind = "other"; I.passes = 0; I.srcC = set(); I.srcAB = set(); I.data = set()
    R = [regs(o) for o in ops]
    allr = lambda xs: set().union(*xs) if xs else set()
    if mn.startswith("v_mfma"):
        I.kind = "mfma"; I.w = R[0]; I.srcAB = R[1] | R[2]; I.srcC = R[3]; I.r = I.srcAB | I.srcC
        I.passes = 8 if "32x32x16" in mn else 4 if "16x16x32" in mn else 16
    elif mn.startswith("v_"):
        I.kind = "valu"
        if mn.startswith("v_permlane") and "swap" in mn:
            I.w = R[0] | R[1]; I.r = R[0] | R[1]
        elif mn.startswith(("v_add_co", "v_sub_co", "v_addc_co", "v_subb_co", "v_subrev_co")):
            I.w = R[0] | R[1]; I.r = allr(R[2:])
        else:
            I.w = R[0]; I.r = allr(R[1:])
            if mn.startswith(("v_fmac", "v_dot2c", "v_pk_fmac", "v_writelane")): I.r |= R[0]
            if mn.startswith("v_cmpx"): I.w |= regs("exec")
    elif mn.startswith("ds_"):
        I.kind = "ds"
        if mn.startswith(("ds_read", "ds_bpermute", "ds_permute", "ds_swizzle")):
            I.w = R[0]; I.r = allr(R[1:])
            if "d16" in mn: I.r |= R[0]
        else: I.r = allr(R)
    elif mn.startswith(("buffer_", "global_")):
        I.kind = "vmem"
        islds = ("lds" in mods.split()) or ("_lds_" in mn)
        if "load" in mn and not islds:
            I.w = R[0]; I.r = allr(R[1:])
            if "d16" in mn: I.r |= R[0]
        else:
            I.r = allr(R)
            if islds: I.r |= regs("m0"); I.kind = "ldsdma"
            if "store" in mn and ("x4" in mn or "x3" in mn):
                I.data = R[0] if mn.startswith("buffer_") else R[1]
    elif mn.startswith("s_"):
        I.kind = "salu"
        if mn in ("s_nop", "s_waitcnt", "s_barrier", "s_endpgm", "s_setprio", "s_sleep") or mn.startswith(("s_cbranch", "s_branch", "s_cmp")):
            I.r = allr(R)
        else:
            I.w = R[0] if R else set(); I.r = allr(R[1:])
            if "saveexec" in mn: I.w |= regs("exec")
    return I
def need(P, C):
    n = 0
    Pv = {x for x in P.w if x[0] in "va"}; Ps = {x for x in P.w if x[0] == "s"}
    if P.kind == "valu":
        isdot = P.mn.startswith("v_dot")
        if C.kind == "mfma" and (Pv & C.r): n = max(n, 3 if isdot else 2)
        if C.kind == "valu":
            if C.mn.startswith("v_permlane") and (Pv & C.r): n = max(n, 2)
            if ("_dpp" in C.mn or "row_" in C.mods or "quad_perm" in C.mods) and (Pv & C.r): n = max(n, 2)
            if C.mn.startswith(("v_readfirstlane", "v_readlane")) and (Pv & C.r): n = max(n, 1)
            if P.mn.replace("_e32", "").replace("_e64", "") in TRANS and (Pv & C.r): n = max(n, 1)
            if ("sdwa" in P.mn or "op_sel" in P.mods) and not P.mn.startswith("v_pk_") and (Pv & (C.r | C.w)): n = max(n, 1)
            if Ps & C.r:
                n = max(n, 4 if C.mn.startswith(("v_readlane", "v_writelane")) else 2)
            if (("s", 126) in Ps):
                if C.mn.startswith(("v_readlane", "v_readfirstlane", "v_writelane", "v_permlane")): n = max(n, 4)
                if "_dpp" in C.mn: n = max(n, 5)
        if isdot and (Pv & (C.r | C.w)):
            if not (C.mn == P.mn and not (Pv & set().union(*[regs(o) for o in C.ops[1:3]]))): n = max(n, 3)
        if C.kind in ("vmem", "ldsdma") and (Ps & C.r): n = max(n, 5)
        if C.kind == "mfma" and (("s", 126) in Ps): n = max(n, 4)
    if P.kind == "mfma":
        big = {4: 8, 8: 12, 16: 20}[P.passes]; ovl = {4: 6, 8: 10, 16: 18}[P.passes]; war = {4: 3, 8: 7, 16: 15}[P.passes]
        if C.kind == "mfma":
            if P.w & C.srcAB: n = max(n, big)
            if P.w & C.srcC:
                if not (P.w == C.srcC and P.passes == C.passes): n = max(n, ovl)
            elif P.w & C.w: n = max(n, big)
        elif C.kind in ("valu", "ds", "vmem", "ldsdma"):
            if P.w & (C.r | C.w): n = max(n, big)
            if C.kind == "valu" and (P.srcC & C.w): n = max(n, war)
    if P.kind == "salu" and (("s", 124) in P.w) and C.kind == "ldsdma": n = max(n, 1)
    if P.kind == "salu" and (("s", 124) in P.w) and C.mn.startswith(("v_movrel", "s_movrel")): n = max(n, 1)
    if P.kind == "vmem" and P.data and (P.data & C.w): n = max(n, 2 if C.kind == "valu" else 1)
    return n
def fix_hazards(lines):
    out = []; hist = []
    for ln in lines:
        I = parse(ln)
        if I is None:
            out.append(ln); continue
        req = 0
        for P, dist in hist:
            k = need(P, I) - dist
            if k > req: req = k
        if req > 0:
            r = req
            while r > 0:
                t = min(r, 16); out.append(f"s_nop {t-1}"); r -= t
            for h in hist: h[1] += req
        out.append(ln)
        step = 1
        if I.mn == "s_nop": step = int(I.ops[0], 0) + 1
        for h in hist: h[1] += step
        hist = [h for h in hist if h[1] < 24]
        hist.append([I, 0])
    return out
def longs(arr, per=16):
    import numpy as np
    w = np.ascontiguousarray(arr).view(np.uint32).ravel()
    out = []
    for i in range(0, len(w), per):
        out.append(".long " + ",".join("0x%x" % v for v in w[i:i + per]))
    return "\n".join(out)
```

```python
from common import *
from asmlib import *

def srd(a, d, lo, hi, nbytes):
    a(f"""s_mov_b32 s{d}, s{lo}
    s_mov_b32 s{d+1}, s{hi}
    s_mov_b32 s{d+2}, {hex(nbytes)}
    s_mov_b32 s{d+3}, 0x00020000""")
def tab_srd(a, d, label, nbytes):
    a(f"""s_getpc_b64 s[{d}:{d+1}]
    s_add_u32 s{d}, s{d}, {label}@rel32@lo+4
    s_addc_u32 s{d+1}, s{d+1}, {label}@rel32@hi+12
    s_mov_b32 s{d+2}, {hex(nbytes)}
    s_mov_b32 s{d+3}, 0x00020000""")

K1_MAIN, K1_WF, K1_GEMV = 128, 66, 48
K1_GRID = K1_MAIN + K1_WF + K1_GEMV
K1_LDS = 64 * 288
MIMIC1 = True

def k1(a):
    a.label("k1_kernel")
    a.stamp(0, True); a.stamp(1)
    a(f"""s_cmp_ge_u32 s2, {K1_GRID}
    s_cbranch_scc1 K1_END
    s_load_dwordx2 s[6:7], s[0:1], 88
    s_cmp_ge_u32 s2, {K1_MAIN + K1_WF}
    s_cbranch_scc1 K1_GEMV
    s_cmp_ge_u32 s2, {K1_MAIN}
    s_cbranch_scc1 K1_WF""")
    X = 16
    F = 80
    a(f"""s_load_dwordx2 s[4:5], s[0:1], 0
    s_and_b32 s20, s2, 7
    s_lshl_b32 s20, s20, 2
    s_lshr_b32 s21, s2, 3
    s_and_b32 s21, s21, 3
    s_add_u32 s20, s20, s21          ; s20 = s2v
    s_lshr_b32 s21, s2, 5            ; s21 = cc
    s_lshl_b32 s22, s20, 10          ; s2v*1024
    v_lshrrev_b32 v1, 6, v0          ; w
    v_and_b32 v2, 15, v0
    v_lshl_add_u32 v2, v1, 4, v2     ; rho
    v_bfe_u32 v3, v0, 4, 2           ; q
    v_lshlrev_b32 v4, 15, v2
    v_lshl_add_u32 v4, v3, 4, v4     ; voff_x""")
    for j in range(4):
        a(f"""s_add_u32 s{24+j}, s21, {j}
        s_and_b32 s{24+j}, s{24+j}, 3
        s_lshl_b32 s{24+j}, s{24+j}, 8
        s_add_u32 s{24+j}, s{24+j}, s22""")
    tab_srd(a, 16, "TAB_F1", 8192)
    a("v_and_b32 v5, 63, v0\nv_lshlrev_b32 v5, 4, v5      ; lane*16")
    a("s_waitcnt lgkmcnt(0)")
    srd(a, 8, 4, 5, 2048 * 1024)
    srd(a, 12, 6, 7, WS_SIZE)
    for t in range(16):
        a(f"buffer_load_dwordx4 v[{X+4*t}:{X+4*t+3}], v4, s[8:11], s{24+t//4} offen offset:{64*(t%4)}")
    a("s_movk_i32 s28, 0x1000")
    for f in range(8):
        a(f"buffer_load_dwordx4 v[{F+4*f}:{F+4*f+3}], v5, s[16:19], {'s28' if f >= 4 else '0'} offen offset:{1024*(f%4)}")
    a.stamp(2)
    a(f"""v_mul_u32_u24 v6, 288, v2
    v_lshl_add_u32 v6, v3, 6, v6
    v_and_b32 v7, 3, v0               ; c
    v_bfe_u32 v8, v0, 2, 2            ; rr
    v_bfe_u32 v9, v0, 4, 1            ; G%2
    v_bfe_u32 v10, v0, 5, 1           ; G/2 (= h')
    v_and_b32 v11, 1, v7
    v_lshl_add_u32 v11, v11, 1, v9    ; d1t
    v_lshl_add_u32 v11, v1, 2, v11    ; d1
    v_lshrrev_b32 v12, 3, v11         ; d1/8
    v_lshrrev_b32 v13, 1, v7          ; eh
    v_lshl_add_u32 v12, v13, 1, v12   ; q src
    v_lshlrev_b32 v12, 6, v12
    v_and_b32 v11, 7, v11
    v_lshl_add_u32 v12, v11, 3, v12
    v_lshl_add_u32 v8, v10, 3, v8
    v_mul_u32_u24 v8, 288, v8
    v_add_u32 v7, v8, v12
    v_and_b32 v8, 31, v0              ; slot
    v_lshlrev_b32 v8, 16, v8
    v_lshl_add_u32 v9, v1, 1, v10     ; 2w + h'
    v_lshl_add_u32 v8, v9, 13, v8
    s_lshr_b32 s30, s21, 1
    s_lshl_b32 s30, s30, 10
    s_lshl_b32 s31, s20, 5
    s_add_u32 s30, s30, s31
    s_and_b32 s31, s21, 1
    s_lshl_b32 s31, s31, 4
    s_add_u32 s30, s30, s31
    s_add_u32 s30, s30, {hex(ABUF_OFF)}
    s_add_u32 s31, s30, 0x1000
    v_mov_b32 v9, 0x3f803f80
    v_mov_b32 v10, 0
    v_mov_b32 v11, 0
    v_mov_b32 v12, 0
    v_mov_b32 v13, 0""")
    for t in range(16):
        if t % 2 == 0: a(f"s_waitcnt vmcnt({8 + 14 - t})")
        for j in range(4):
            r = X + 4 * t + j
            a(f"v_dot2c_f32_bf16 v{10 + (j%2)}, v{r}, v9")
            a(f"v_dot2c_f32_bf16 v{12 + (j%2)}, v{r}, v{r}")
    a.stamp(3)
    a("""v_add_f32 v10, v10, v11
    v_add_f32 v12, v12, v13
    v_mov_b32 v11, v10
    v_mov_b32 v13, v12
    v_permlane16_swap_b32 v10, v11
    v_permlane16_swap_b32 v12, v13
    v_add_f32 v10, v10, v11
    v_add_f32 v12, v12, v13
    v_mov_b32 v11, v10
    v_mov_b32 v13, v12
    v_permlane32_swap_b32 v10, v11
    v_permlane32_swap_b32 v12, v13
    v_add_f32 v10, v10, v11
    v_add_f32 v12, v12, v13
    v_mul_f32 v10, 0x3b000000, v10      ; mean
    v_mul_f32 v12, 0x3b000000, v12
    v_fma_f32 v12, -v10, v10, v12       ; var
    v_max_f32 v12, 0, v12""")
    if MIMIC1:
        a("""v_cvt_pk_bf16_f32 v11, v10, v12
        v_lshlrev_b32 v10, 16, v11
        v_and_b32 v12, 0xffff0000, v11
        v_add_f32 v12, 0x3727c5ac, v12
        v_cvt_pk_bf16_f32 v12, v12, v12
        v_lshlrev_b32 v12, 16, v12
        v_sqrt_f32 v12, v12
        v_cvt_pk_bf16_f32 v12, v12, v12
        v_lshlrev_b32 v12, 16, v12
        v_rcp_f32 v12, v12""")
    else:
        a("""v_add_f32 v12, 0x3727c5ac, v12
        v_rsq_f32 v12, v12""")
    O = X + 16
    T = X + 32
    for j in range(4):
        for hi in range(2):
            d1l = 2 * j + hi
            for tp in range(2):
                t0 = T + 2 * ((d1l * 2 + tp) % 8)
                for z in range(2):
                    src = X + 4 * (2 * tp + z) + j
                    if hi: a(f"v_and_b32 v{t0+z}, 0xffff0000, v{src}")
                    else: a(f"v_lshlrev_b32 v{t0+z}, 16, v{src}")
                a(f"v_pk_add_f32 v[{t0}:{t0+1}], v[{t0}:{t0+1}], v[10:11] op_sel_hi:[1,0] neg_lo:[0,1] neg_hi:[0,1]")
                if MIMIC1:
                    a(f"""v_cvt_pk_bf16_f32 v{t0+1}, v{t0}, v{t0+1}
                    v_lshlrev_b32 v{t0}, 16, v{t0+1}
                    v_and_b32 v{t0+1}, 0xffff0000, v{t0+1}""")
                a(f"v_pk_mul_f32 v[{t0}:{t0+1}], v[{t0}:{t0+1}], v[12:13] op_sel_hi:[1,0]")
                a(f"v_cvt_pk_bf16_f32 v{O + 2*d1l + tp}, v{t0}, v{t0+1}")
        a(f"ds_write_b128 v6, v[{O+4*j}:{O+4*j+3}] offset:{16*j}")
    a("s_waitcnt lgkmcnt(0)\ns_barrier")
    a.stamp(4)
    A = X
    ACC = X + 32
    for ks in range(4):
        for hf in range(2):
            a(f"ds_read_b64_tr_b16 v[{A+4*ks+2*hf}:{A+4*ks+2*hf+1}], v7 offset:{(16*ks+4*hf)*288}")
    a("s_waitcnt vmcnt(0)")
    for ks in range(4):
        a(f"s_waitcnt lgkmcnt({6-2*ks})")
        for nt in range(2):
            c = "0" if ks == 0 else f"v[{ACC+16*nt}:{ACC+16*nt+15}]"
            a(f"v_mfma_f32_32x32x16_bf16 v[{ACC+16*nt}:{ACC+16*nt+15}], v[{A+4*ks}:{A+4*ks+3}], v[{F+4*(4*nt+ks)}:{F+4*(4*nt+ks)+3}], {c}")
    P = X + 16
    for nt in range(2):
        for gm in range(2):
            pb = P + 4 * (2 * nt + gm)
            for z in range(4):
                s = ACC + 16 * nt + 8 * gm + 2 * z
                a(f"v_cvt_pk_bf16_f32 v{pb+z}, v{s}, v{s+1}")
            a(f"buffer_store_dwordx4 v[{pb}:{pb+3}], v8, s[12:15], s{30+gm} offen offset:{2048*nt}")
    a.stamp(5)
    if Asm.STAMP: a("s_waitcnt vmcnt(0)\nv_readfirstlane_b32 s3, v1")
    a.stamp_end(0, 4)
    a("s_endpgm")
    a.label("K1_WF")
    a(f"""s_load_dwordx4 s[16:19], s[0:1], 8      ; w_r, w_i
    s_sub_u32 s20, s2, {K1_MAIN}
    s_lshr_b32 s21, s20, 1            ; g
    s_and_b32 s22, s20, 1             ; fr
    v_lshrrev_b32 v1, 6, v0           ; wave
    v_and_b32 v2, 1, v1               ; kh
    v_lshrrev_b32 v3, 1, v1           ; h'
    v_bfe_u32 v4, v0, 2, 4            ; k2l
    v_and_b32 v5, 3, v0               ; wq
    v_lshl_add_u32 v4, v2, 4, v4      ; k2
    v_lshlrev_b32 v6, 6, v4
    v_add_u32 v6, s21, v6             ; k
    v_sub_u32 v7, 0x800, v6
    v_and_b32 v7, 0x7ff, v7           ; -k
    v_mul_u32_u24 v6, 514, v6
    v_mul_u32_u24 v7, 514, v7
    v_lshlrev_b32 v8, 7, v3
    v_lshl_add_u32 v8, v5, 4, v8      ; 128h' + 16wq
    v_add_u32 v9, v6, v8              ; fr=0 addr (x: +64*(4(x/2)+x%2))
    v_sub_u32 v10, v7, v8
    v_add_u32 v10, {2*(512-256-7) - 64*5}, v10
    s_lshl_b32 s27, s22, 9
    s_cmp_eq_u32 s22, 0
    s_cselect_b64 s[24:25], -1, 0
    s_cselect_b32 s26, 0, 0x80008000
    v_cndmask_b32 v9, v10, v9, s[24:25]""")
    for x, kx in enumerate((0, 1, 4, 5)):
        a(f"s_mov_b32 s{28+x}, {64*(5-kx)}\ns_cmov_b32 s{28+x}, {64*kx}")
    a(f"""s_lshl_b32 s23, s21, 16
    s_lshl_b32 s40, s22, 10
    s_add_u32 s23, s23, s40
    s_add_u32 s23, s23, {hex(WF_OFF)}
    s_cmp_eq_u32 s22, 0""")
    for jj in range(8):
        o = lambda j: (j % 2) * 32768 + (j // 2) * 2048
        a(f"s_mov_b32 s{32+jj}, {o(7-jj)}\ns_cmov_b32 s{32+jj}, {o(jj)}")
    for jj in range(8):
        a(f"s_add_u32 s{32+jj}, s{32+jj}, s23")
    a("s_waitcnt lgkmcnt(0)")
    srd(a, 8, 16, 17, 2048 * 514)
    srd(a, 44, 18, 19, 2048 * 514)
    srd(a, 12, 6, 7, WS_SIZE)
    Rr, Ii = 16, 32
    for x in range(4):
        a(f"buffer_load_dwordx4 v[{Rr+4*x}:{Rr+4*x+3}], v9, s[8:11], s{28+x} offen")
        a(f"buffer_load_dwordx4 v[{Ii+4*x}:{Ii+4*x+3}], v9, s[44:47], s{28+x} offen")
    a(f"""buffer_load_ushort v48, v6, s[8:11], s27 offen
    buffer_load_ushort v49, v6, s[44:47], s27 offen
    buffer_load_ushort v50, v7, s[8:11], s27 offen
    buffer_load_ushort v51, v7, s[44:47], s27 offen
    v_lshl_add_u32 v11, v3, 5, v4     ; lane' = k2 + 32h'
    v_lshlrev_b32 v11, 4, v11
    v_lshl_add_u32 v11, v5, 13, v11   ; + wq*4*2048
    v_cmp_eq_u32 vcc, 0, v8           ; h'==0 && wq==0
    s_and_b64 s[48:49], vcc, s[24:25]
    s_andn2_b64 s[50:51], vcc, s[24:25]
    s_mov_b32 s41, 0x05040100
    s_mov_b32 s42, 0x07060302
    s_waitcnt vmcnt(0)
    v_lshlrev_b32 v48, 16, v48
    v_lshlrev_b32 v49, 16, v49
    v_lshlrev_b32 v50, 16, v50
    v_lshlrev_b32 v51, 16, v51
    v_add_f32 v48, v48, v50
    v_sub_f32 v49, v49, v51
    v_mul_f32 v48, 0.5, v48
    v_mul_f32 v49, 0.5, v49
    v_cvt_pk_bf16_f32 v48, v48, v49""")
    for r in range(16):
        a(f"v_xor_b32 v{Ii+r}, s26, v{Ii+r}")
    for jj in range(8):
        ob = 52 + 4 * (jj % 4)
        for x in range(4):
            a(f"v_perm_b32 v{ob+x}, v{Ii+4*x+jj//2}, v{Rr+4*x+jj//2}, s{41 + jj%2}")
        if jj == 0: a(f"v_cndmask_b32 v{ob}, v{ob}, v48, s[48:49]")
        if jj == 7: a(f"v_cndmask_b32 v{ob}, v{ob}, v48, s[50:51]")
        a(f"buffer_store_dwordx4 v[{ob}:{ob+3}], v11, s[12:15], s{32+jj} offen")
    a.stamp(5)
    if Asm.STAMP: a("s_waitcnt vmcnt(0)\nv_readfirstlane_b32 s3, v1")
    a.stamp_end(0, 4)
    a("s_endpgm")
    a.label("K1_GEMV")
    a(f"""s_load_dwordx4 s[16:19], s[0:1], 56     ; c, w_mod
    s_sub_u32 s20, s2, {K1_MAIN + K1_WF}     ; j
    s_lshl_b32 s21, s20, 7
    v_and_b32 v1, 7, v0                     ; cg
    v_lshrrev_b32 v2, 3, v0                 ; rg
    v_mul_u32_u24 v3, 6144, v2
    v_lshl_add_u32 v3, v1, 4, v3
    v_lshlrev_b32 v4, 2, v0
    s_waitcnt lgkmcnt(0)""")
    srd(a, 8, 16, 17, 1024)
    srd(a, 44, 18, 19, 512 * 6144)
    srd(a, 12, 6, 7, WS_SIZE)
    a("buffer_load_dword v5, v4, s[8:11], 0 offen")
    Wm = 16
    for it in range(16):
        a(f"buffer_load_dwordx4 v[{Wm+4*it}:{Wm+4*it+3}], v3, s[44:47], s21 offen")
        if it < 15: a(f"s_add_u32 s21, s21, {32*6144}")
    a(f"""s_waitcnt vmcnt(16)
    v_lshlrev_b32 v6, 16, v5
    v_and_b32 v7, 0xffff0000, v5
    v_mul_f32 v8, 0xbfb8aa3b, v6
    v_mul_f32 v9, 0xbfb8aa3b, v7
    v_exp_f32 v8, v8
    v_exp_f32 v9, v9
    v_add_f32 v8, 1.0, v8
    v_add_f32 v9, 1.0, v9
    v_rcp_f32 v8, v8
    v_rcp_f32 v9, v9
    v_mul_f32 v6, v6, v8
    v_mul_f32 v7, v7, v9
    v_cvt_pk_bf16_f32 v6, v6, v7
    v_and_b32 v7, 0xffff, v6
    v_lshrrev_b32 v6, 16, v6
    v_and_b32 v8, 15, v0              ; (2t%32)/2
    v_lshrrev_b32 v9, 4, v0           ; it = 2t/32
    v_lshlrev_b32 v8, 7, v8           ; rg*64 bytes (rg = 2*(t%16))
    v_lshl_add_u32 v8, v9, 2, v8
    ds_write2_b32 v8, v7, v6 offset0:0 offset1:16
    v_lshlrev_b32 v9, 6, v2
    s_waitcnt lgkmcnt(0)
    s_barrier""")
    SC = 80
    for z in range(4):
        a(f"ds_read_b128 v[{SC+4*z}:{SC+4*z+3}], v9 offset:{16*z}")
    AC = 112
    for z in range(8): a(f"v_mov_b32 v{AC+z}, 0")
    a("s_waitcnt lgkmcnt(0)")
    for it in range(16):
        a(f"v_lshlrev_b32 v{SC+16+it}, 16, v{SC+it}")
    for it in range(16):
        a(f"s_waitcnt vmcnt({15-it})")
        for z in range(4):
            a(f"v_dot2c_f32_bf16 v{AC+2*z}, v{Wm+4*it+z}, v{SC+it}")
            a(f"v_dot2c_f32_bf16 v{AC+2*z+1}, v{Wm+4*it+z}, v{SC+16+it}")
    a(f"""v_lshlrev_b32 v5, 8, v2
    v_lshl_add_u32 v5, v1, 5, v5
    ds_write_b128 v5, v[{AC}:{AC+3}] offset:4096
    ds_write_b128 v5, v[{AC+4}:{AC+7}] offset:4112
    s_waitcnt lgkmcnt(0)
    s_barrier
    v_and_b32 v6, 63, v0              ; col
    v_lshrrev_b32 v7, 6, v0
    v_lshlrev_b32 v8, 11, v7
    v_lshl_add_u32 v8, v6, 2, v8""")
    for z in range(4):
        a(f"ds_read2st64_b32 v[{16+2*z}:{17+2*z}], v8 offset0:{16+2*z} offset1:{17+2*z}")
    a("""s_waitcnt lgkmcnt(0)
    v_add_f32 v16, v16, v17
    v_add_f32 v18, v18, v19
    v_add_f32 v20, v20, v21
    v_add_f32 v22, v22, v23
    v_add_f32 v16, v16, v18
    v_add_f32 v20, v20, v22
    v_add_f32 v16, v16, v20
    ds_write_b32 v4, v16
    s_waitcnt lgkmcnt(0)
    s_barrier
    v_cmp_gt_u32 vcc, 64, v0
    s_and_saveexec_b64 s[24:25], vcc
    s_cbranch_execz K1_END
    ds_read2st64_b32 v[16:17], v4 offset0:0 offset1:1
    ds_read2st64_b32 v[18:19], v4 offset0:2 offset1:3
    s_lshr_b32 s21, s20, 3            ; part
    s_and_b32 s22, s20, 7
    s_lshl_b32 s22, s22, 6            ; d0
    v_add_u32 v5, s22, v0             ; d
    v_and_b32 v6, 15, v5              ; d1
    v_lshrrev_b32 v7, 7, v5           ; cc
    v_bfe_u32 v8, v5, 4, 1
    v_bfe_u32 v9, v5, 5, 2
    v_lshl_add_u32 v8, v8, 2, v9      ; e
    v_lshl_add_u32 v8, v7, 3, v8
    v_lshl_add_u32 v8, v6, 5, v8
    s_waitcnt lgkmcnt(0)
    v_add_f32 v16, v16, v17
    v_add_f32 v18, v18, v19
    v_add_f32 v16, v16, v18
    v_cvt_pk_bf16_f32 v16, v16, v16
    v_lshlrev_b32 v16, 16, v16
    s_cmp_eq_u32 s21, 1
    s_cselect_b32 s23, 1.0, 0
    s_cmp_eq_u32 s21, 4
    s_cselect_b32 s23, 1.0, s23
    v_add_f32 v16, s23, v16
    v_cvt_pk_bf16_f32 v16, v16, v16
    v_lshlrev_b32 v16, 16, v16
    s_lshl_b32 s23, s20, 8""")
    a(f"""buffer_store_dword v16, v4, s[12:15], s23 offen
    s_cmp_eq_u32 s21, 1
    s_cbranch_scc0 K1_G2
    v_lshlrev_b32 v9, 2, v8
    s_movk_i32 s23, {hex(CA1K_OFF)}
    buffer_store_dword v16, v9, s[12:15], s23 offen""")
    a.label("K1_G2")
    if Asm.STAMP: a("s_waitcnt vmcnt(0)\ns_mov_b32 s3, 0")
    a.stamp_end(0, 4)
    if Asm.STAMP: a("s_mov_b64 exec, -1")
    a(f"""s_cmp_eq_u32 s21, 0
    s_cbranch_scc0 K1_END
    v_mul_f32 v16, 0x42800000, v16
    v_lshrrev_b32 v16, 16, v16
    v_lshlrev_b32 v9, 1, v8
    s_movk_i32 s23, {hex(SA64K_OFF)}
    buffer_store_short v16, v9, s[12:15], s23 offen""")
    a.label("K1_END")
    a("s_endpgm")
```

```python
from common import *
from asmlib import *
from gen_k1 import srd, tab_srd

K2_MAIN = 80
K2_WGU, K2_WD = 88, 43
K2_GRID = K2_MAIN + K2_WGU + K2_WD
L_TA, L_TS, L_TBF, L_TBI, L_TAI, L_TAB, L_CA, L_SA = 0, 8192, 16384, 18432, 20480, 22528, 24576, 26624
L_X1 = 28672
L_X2 = L_X1 + 32768
K2_LDS = L_X2 + 32 * 1088
K2_VGPR = 256

def k2(a):
    a.label("k2_kernel")
    a.stamp(0, True); a.stamp(1)
    a(f"""s_cmp_ge_u32 s2, {K2_GRID}
    s_cbranch_scc1 K2_END
    s_load_dwordx2 s[6:7], s[0:1], 88
    v_lshrrev_b32 v1, 6, v0
    v_and_b32 v2, 63, v0              ; lane
    s_nop 0
    v_readfirstlane_b32 s3, v1        ; wave
    s_cmp_ge_u32 s2, {K2_MAIN}
    s_cbranch_scc1 K2_SIDE
    s_and_b32 s20, s2, 7
    s_lshr_b32 s21, s2, 4
    s_lshl_b32 s21, s21, 3
    s_add_u32 s20, s20, s21           ; g
    s_cmp_gt_u32 s20, 32
    s_cbranch_scc1 K2_END
    s_bfe_u32 s21, s2, 0x10003        ; p""")
    tab_srd(a, 16, "TAB_K2", 2 * 24576)
    DATA, WFR, ANG, TS, TAS, TMP, CA, ACC = 16, 48, 64, 96, 128, 160, 192, 224
    a(f"""v_lshlrev_b32 v3, 4, v2           ; lane*16
    s_mul_i32 s22, s21, 24576
    s_mul_i32 s23, s3, 3072
    s_add_u32 s22, s22, s23
    s_mov_b32 m0, s23
    s_nop 0
    buffer_load_dwordx4 v3, s[16:19], s22 offen lds
    buffer_load_dwordx4 v3, s[16:19], s22 offen offset:1024 lds
    buffer_load_dwordx4 v3, s[16:19], s22 offen offset:2048 lds
    s_waitcnt lgkmcnt(0)""")
    srd(a, 12, 6, 7, WS_SIZE)
    a(f"""s_lshl_b32 s23, s3, 10
    s_add_u32 s24, s23, {hex(CA1K_OFF)}
    s_cmp_eq_u32 s3, 2
    s_cmov_b32 s24, {hex(SA64K_OFF)}
    s_add_u32 s23, s23, {L_CA}
    s_cmp_lt_u32 s3, 3
    s_cbranch_scc0 K2_NOCA
    s_mov_b32 m0, s23
    s_nop 0
    buffer_load_dwordx4 v3, s[12:15], s24 offen lds""")
    a.label("K2_NOCA")
    a(f"""v_and_b32 v4, 31, v0
    v_lshlrev_b32 v4, 5, v4
    v_bfe_u32 v5, v0, 5, 1            ; h
    v_lshl_add_u32 v4, v5, 4, v4
    v_lshl_add_u32 v4, v1, 13, v4
    s_and_b32 s24, s20, 31            ; slot
    s_lshl_b32 s25, s24, 16
    s_add_u32 s25, s25, {hex(ABUF_OFF)}      ; c=0 base
    s_add_u32 s26, s25, 2048                 ; c=1 base
    s_cmp_eq_u32 s20, 32
    s_cmov_b32 s25, s26
    s_cmp_eq_u32 s24, 0
    s_cmov_b32 s26, {hex(OOB)}
    s_add_u32 s27, s25, 4096
    s_add_u32 s28, s26, 4096""")
    for sg in range(2):
        for c in range(2):
            for u in range(2):
                d = DATA + 16 * sg + 4 * (2 * c + u)
                a(f"buffer_load_dwordx4 v[{d}:{d+3}], v4, s[12:15], s{25 + c + 2*sg} offen offset:{1024*u}")
    a(f"""v_lshl_add_u32 v6, v1, 12, v3
    s_lshl_b32 s29, s20, 16
    s_lshl_b32 s30, s21, 15
    s_add_u32 s29, s29, s30
    s_add_u32 s29, s29, {hex(WF_OFF)}""")
    for sg in range(2):
        for fr in range(2):
            d = WFR + 8 * sg + 4 * fr
            a(f"buffer_load_dwordx4 v[{d}:{d+3}], v6, s[12:15], s29 offen offset:{2048*sg+1024*fr}")
    a.stamp(2)
    a(f"""v_and_b32 v7, 15, v0              ; lam
    v_bfe_u32 v8, v0, 4, 1            ; q%2
    v_lshlrev_b32 v8, 4, v8
    v_lshl_add_u32 v8, v5, 2, v8      ; s2 base = 16(q%2)+4(q/2)
    v_mul_u32_u24 v9, s20, v8         ; s2base*g
    s_lshl_b32 s30, s3, 4             ; 8*2w
    v_mad_u32_u24 v9, v7, s30, v9     ; + 16 w lam
    v_lshlrev_b32 v10, 3, v7          ; 8 lam""")
    for sg in range(2):
        for rho in range(8):
            v, r = rho // 4, rho % 4
            cr = ANG + 16 * sg + rho; sr = cr + 8
            a(f"""s_mul_i32 s30, s20, {8*v + r}
            v_add_u32 v{cr}, s30, v9
            v_and_b32 v{cr}, 0x7ff, v{cr}
            v_cvt_f32_u32 v{cr}, v{cr}
            v_mul_f32 v{cr}, 0x3a000000, v{cr}
            v_sin_f32 v{sr}, v{cr}
            v_cos_f32 v{cr}, v{cr}""")
        if sg == 0: a("v_add_u32 v9, v9, v10")
    a(f"""v_bfe_u32 v9, v0, 4, 2            ; q
    v_bfe_u32 v10, v0, 2, 1           ; (lam/4)%2
    v_bfe_u32 v11, v0, 3, 1           ; lam/8
    v_and_b32 v12, 3, v0
    v_lshl_add_u32 v12, v10, 4, v12
    v_lshl_add_u32 v12, v11, 2, v12   ; nu(0,lam)
    v_lshlrev_b32 v12, 2, v12
    v_lshl_add_u32 v12, v9, 13, v12
    v_lshl_add_u32 v12, v1, 8, v12
    v_add_u32 v12, {L_X1}, v12
    v_and_b32 v13, 31, v0
    v_lshlrev_b32 v13, 2, v13
    v_lshl_add_u32 v13, v5, 9, v13
    v_lshl_add_u32 v13, v1, 12, v13
    v_add_u32 v13, {L_X1}, v13
    v_mul_u32_u24 v14, 1088, v8
    v_lshl_add_u32 v14, v1, 7, v14
    v_lshl_add_u32 v14, v7, 2, v14
    v_add_u32 v14, {L_X2}, v14
    v_lshl_add_u32 v15, v1, 2, v10    ; s2 = 4w + (i/4)%2
    v_mul_u32_u24 v15, 1088, v15
    v_lshl_add_u32 v15, v5, 8, v15    ; + 4h*16*4
    v_bfe_u32 v9, v0, 3, 2            ; i/8
    v_and_b32 v10, 3, v0
    v_lshl_add_u32 v9, v9, 2, v10     ; d1
    v_lshl_add_u32 v15, v9, 2, v15
    v_add_u32 v15, {L_X2}, v15
    v_lshlrev_b32 v9, 5, v5
    v_lshl_add_u32 v9, v1, 8, v9
    v_lshlrev_b32 v10, 4, v5
    v_lshl_add_u32 v10, v1, 7, v10
    """)
    a.stamp(3)
    a("s_waitcnt vmcnt(12)\ns_barrier")
    a.stamp(4)
    for f in range(8):
        a(f"ds_read_b128 v[{TMP+4*f}:{TMP+4*f+3}], v3 offset:{L_TA + 1024*f}")
    for sg in range(2):
        for u in range(2):
            for z in range(2):
                d = CA + 16 * sg + 8 * u + 4 * z
                a(f"ds_read_b128 v[{d}:{d+3}], v9 offset:{L_CA + 128*sg + 64*u + 16*z}")
    a("s_waitcnt lgkmcnt(0)")
    for f in range(8):
        a(f"ds_read_b128 v[{TS+4*f}:{TS+4*f+3}], v3 offset:{L_TS + 1024*f}")
    for sg in range(2):
        for f in range(4):
            u = f % 2
            for e in range(0, 8, 2):
                t = ACC + 2 * ((f * 4 + e // 2) % 16)
                a(f"v_pk_mul_f32 v[{t}:{t+1}], v[{TMP+8*f+e}:{TMP+8*f+e+1}], v[{CA+16*sg+8*u+e}:{CA+16*sg+8*u+e+1}]")
                a(f"v_cvt_pk_bf16_f32 v{TAS+16*sg+4*f+e//2}, v{t}, v{t+1}")
    TBF, TBI, TAI, OP = TMP, TMP + 8, TMP + 16, TMP + 24
    for nm, off in ((TBF, L_TBF), (TBI, L_TBI), (TAI, L_TAI)):
        for v in range(2):
            a(f"ds_read_b128 v[{nm+4*v}:{nm+4*v+3}], v3 offset:{off + 1024*v}")
    acc = lambda sg: f"v[{ACC+16*sg}:{ACC+16*sg+15}]"
    a.stamp(5)
    for sg in range(2):
        a(f"s_waitcnt vmcnt({8 - 4*sg})")
        for f in range(4):
            d = DATA + 16 * sg + 4 * f; b = TAS + 16 * sg + 4 * f
            a(f"v_mfma_f32_32x32x16_bf16 {acc(sg)}, v[{d}:{d+3}], v[{b}:{b+3}], {'0' if f == 0 else acc(sg)}")
    a("""s_cmp_eq_u32 s20, 0
    s_cbranch_scc0 K2_NOSA""")
    SAr = CA + 8
    for sg in range(2):
        for u in range(2):
            d = SAr + 8 * sg + 4 * u
            a(f"ds_read_b128 v[{d}:{d+3}], v10 offset:{L_SA + 64*sg + 32*u}")
    for u in range(2):
        a(f"ds_read_b128 v[{SAr+16+4*u}:{SAr+16+4*u+3}], v3 offset:{L_TAB + 1024*u}")
    a("s_waitcnt lgkmcnt(0)")
    for sg in range(2):
        for u in range(2):
            d = SAr + 8 * sg + 4 * u
            a(f"v_mfma_f32_32x32x16_bf16 {acc(sg)}, v[{d}:{d+3}], v[{SAr+16+4*u}:{SAr+16+4*u+3}], {acc(sg)}")
    a.label("K2_NOSA")
    WU = DATA
    a("s_waitcnt vmcnt(0)")
    a.stamp(6)
    for sg in range(2):
        for pi in range(8):
            a(f"v_lshlrev_b32 v{WU+16*sg+2*pi}, 16, v{WFR+8*sg+pi}")
            a(f"v_and_b32 v{WU+16*sg+2*pi+1}, 0xffff0000, v{WFR+8*sg+pi}")
    T1 = TAS
    def twiddle(sg, re, im, rho, dst, tt):
        c = ANG + 16 * sg + rho; s = c + 8
        a(f"""v_mul_f32 v{tt}, v{re}, v{c}
        v_mul_f32 v{tt+1}, v{im}, v{c}
        v_fma_f32 v{tt}, v{im}, v{s}, v{tt}
        v_fma_f32 v{tt+1}, -v{re}, v{s}, v{tt+1}
        v_cvt_pk_bf16_f32 v{dst}, v{tt}, v{tt+1}""")
    a("s_nop 7")
    for sg in range(2):
        A0 = ACC + 16 * sg
        for rho in range(8): a(f"v_permlane16_swap_b32 v{A0+rho}, v{A0+8+rho}")
        for rho in range(8): twiddle(sg, A0 + rho, A0 + 8 + rho, rho, OP + 8 * sg + rho, T1 + 2 * rho)
        if sg == 0: a("s_waitcnt lgkmcnt(0)")
        for v in range(2):
            for tc in range(4):
                d = f"v[{A0+4*tc}:{A0+4*tc+3}]"
                a(f"v_mfma_f32_16x16x32_bf16 {d}, v[{OP+8*sg+4*v}:{OP+8*sg+4*v+3}], v[{TS+4*(2*tc+v)}:{TS+4*(2*tc+v)+3}], {'0' if v == 0 else d}")
    for sg in range(2):
        A0 = ACC + 16 * sg
        for t in range(2):
            for r in range(4):
                tt = T1 + 16 + 8 * sg + 4 * t + r
                a(f"v_cvt_pk_bf16_f32 v{tt}, v{A0+8*t+r}, v{A0+8*t+4+r}")
                a(f"ds_write_b32 v12, v{tt} offset:{2048*r + 32*t + 128*sg}")
    a(f"""v_add_u32 v4, 1024, v13
    v_add_u32 v6, 2048, v13
    v_add_u32 v7, 3072, v13
    s_waitcnt lgkmcnt(0)
    s_barrier""")
    a.stamp(7)
    ad = {(0, 0): 13, (0, 1): 4, (1, 0): 6, (1, 1): 7}
    for sg in range(2):
        for v in range(2):
            d = OP + 8 * sg + 4 * v
            a(f"ds_read2_b32 v[{d}:{d+1}], v{ad[(sg,v)]} offset0:0 offset1:32")
            a(f"ds_read2_b32 v[{d+2}:{d+3}], v{ad[(sg,v)]} offset0:64 offset1:96")
    for sg in range(2):
        for v in range(2):
            a(f"s_waitcnt lgkmcnt({6 - 4*sg - 2*v})")
            d = OP + 8 * sg + 4 * v
            a(f"v_mfma_f32_32x32x16_bf16 {acc(sg)}, v[{TBF+4*v}:{TBF+4*v+3}], v[{d}:{d+3}], {'0' if v == 0 else acc(sg)}")
    ACC2 = CA + 8 - 8
    acc2 = lambda sg: f"v[{ACC2+16*sg}:{ACC2+16*sg+15}]"
    OP2 = T1 + 16
    for sg in range(2):
        A0 = ACC + 16 * sg
        for pi in range(8):
            re, im = A0 + 2 * pi, A0 + 2 * pi + 1
            wr, wi = WU + 16 * sg + 2 * pi, WU + 16 * sg + 2 * pi + 1
            tt = T1 + 2 * pi
            a(f"""v_mul_f32 v{tt}, v{re}, v{wr}
            v_mul_f32 v{tt+1}, v{re}, v{wi}
            v_fma_f32 v{tt}, -v{im}, v{wi}, v{tt}
            v_fma_f32 v{tt+1}, v{im}, v{wr}, v{tt+1}
            v_cvt_pk_bf16_f32 v{OP2+8*sg+pi}, v{tt}, v{tt+1}""")
        for v in range(2):
            d = OP2 + 8 * sg + 4 * v
            a(f"v_mfma_f32_32x32x16_bf16 {acc2(sg)}, v[{d}:{d+3}], v[{TBI+4*v}:{TBI+4*v+3}], {'0' if v == 0 else acc2(sg)}")
    OP3 = DATA
    OP3 = WFR
    for sg in range(2):
        A2 = ACC2 + 16 * sg; A0 = ACC + 16 * sg
        for rho in range(8): a(f"v_permlane16_swap_b32 v{A2+rho}, v{A2+8+rho}")
        for rho in range(8): a(f"v_cvt_pk_bf16_f32 v{OP3+8*sg+rho}, v{A2+rho}, v{A2+8+rho}")
        for v in range(2):
            for tc in range(4):
                d = f"v[{A0+4*tc}:{A0+4*tc+3}]"
                a(f"v_mfma_f32_16x16x32_bf16 {d}, v[{TS+4*(2*tc+v)}:{TS+4*(2*tc+v)+3}], v[{OP3+8*sg+4*v}:{OP3+8*sg+4*v+3}], {'0' if v == 0 else d}")
    for sg in range(2):
        A0 = ACC + 16 * sg
        for t in range(2):
            for r in range(4):
                rho = 4 * t + r
                dst = OP + 8 * sg + rho
                twiddle(sg, A0 + 8 * t + r, A0 + 8 * t + 4 + r, rho, dst, T1 + 2 * rho)
                a(f"ds_write_b32 v14, v{dst} offset:{(8*t + r)*1088 + 64*sg}")
    a(f"""v_add_u32 v4, 2176, v15
    v_and_b32 v6, 15, v0
    v_lshlrev_b32 v6, 5, v6           ; d2*32
    v_lshl_add_u32 v6, v5, 16, v6     ; + h'*65536
    v_lshl_add_u32 v6, v1, 18, v6     ; + 4w*65536
    v_bfe_u32 v7, v0, 4, 1            ; c'
    s_movk_i32 s30, 512
    s_cmp_eq_u32 s24, 0
    s_cmov_b32 s30, {hex(OOB)}
    v_mul_lo_u32 v7, v7, s30
    v_add_u32 v6, v6, v7
    s_lshl_b32 s30, s24, 10
    s_cmp_eq_u32 s20, 32
    s_cmov_b32 s30, 512
    s_lshl_b32 s31, s21, 15
    s_add_u32 s30, s30, s31
    s_add_u32 s30, s30, {hex(VBUF_OFF)}
    s_add_u32 s31, s30, 0x20000
    s_waitcnt lgkmcnt(0)
    s_barrier""")
    a.stamp(8)
    ad = {0: 15, 1: 4}
    for sg in range(2):
        for v in range(2):
            d = OP2 + 8 * sg + 4 * v
            a(f"ds_read2_b32 v[{d}:{d+1}], v{ad[sg]} offset0:{128*v} offset1:{128*v+16}")
            a(f"ds_read2_b32 v[{d+2}:{d+3}], v{ad[sg]} offset0:{128*v+32} offset1:{128*v+48}")
    for sg in range(2):
        for v in range(2):
            a(f"s_waitcnt lgkmcnt({6 - 4*sg - 2*v})")
            d = OP2 + 8 * sg + 4 * v
            a(f"v_mfma_f32_32x32x16_bf16 {acc2(sg)}, v[{d}:{d+3}], v[{TAI+4*v}:{TAI+4*v+3}], {'0' if v == 0 else acc2(sg)}")
    for sg in range(2):
        A2 = ACC2 + 16 * sg
        for hf in range(2):
            pb = DATA + 8 * sg + 4 * hf
            for z in range(4):
                a(f"v_cvt_pk_bf16_f32 v{pb+z}, v{A2+8*hf+2*z}, v{A2+8*hf+2*z+1}")
            a(f"buffer_store_dwordx4 v[{pb}:{pb+3}], v6, s[12:15], s{30+sg} offen offset:{16*hf}")
    a.stamp(9)
    if Asm.STAMP: a("s_waitcnt vmcnt(0)")
    a.stamp_end(1, 8)
    a("s_endpgm")
    a.label("K2_SIDE")
    a(f"""s_sub_u32 s20, s2, {K2_MAIN}
    v_lshrrev_b32 v3, 4, v2           ; q
    v_and_b32 v4, 15, v2              ; lam
    v_and_b32 v5, 3, v2               ; lam%4
    v_bfe_u32 v6, v2, 2, 2            ; lam/4
    s_cmp_ge_u32 s20, {K2_WGU}
    s_cbranch_scc1 K2_WD
    s_and_b32 s21, s20, 1             ; kh
    s_bfe_u32 s22, s20, 0x10001       ; gu
    s_lshr_b32 s23, s20, 2            ; G
    s_lshl_b32 s24, s22, 3
    s_add_u32 s24, s24, 32
    s_load_dwordx2 s[4:5], s[0:1], s24
    s_lshl_b32 s21, s21, 3
    s_add_u32 s21, s21, s3            ; ks
    s_mul_i32 s25, s21, {32*2752}
    s_lshl_b32 s26, s23, 7
    s_add_u32 s25, s25, s26
    v_mul_u32_u24 v7, {8*2752}, v3
    v_lshl_add_u32 v7, v4, 3, v7""")
    for e in range(8):
        a(f"s_add_u32 s{32+e}, s25, {e*2752}")
    a(f"""s_mov_b32 s10, {512*2752}
    v_lshlrev_b32 v8, 15, v6
    v_lshl_add_u32 v8, v3, 8, v8
    v_lshl_add_u32 v8, v5, 6, v8
    s_lshl_b32 s26, s23, 17
    s_lshl_b32 s27, s22, 14
    s_add_u32 s26, s26, s27
    s_lshl_b32 s27, s21, 10
    s_add_u32 s26, s26, s27
    s_add_u32 s26, s26, {hex(WGU_OFF)}
    s_branch K2_PACK""")
    a.label("K2_WD")
    a(f"""s_load_dwordx2 s[4:5], s[0:1], 48
    s_sub_u32 s21, s20, {K2_WGU}      ; ks
    s_lshl_b32 s25, s21, 15
    s_lshl_b32 s26, s3, 7
    s_add_u32 s25, s25, s26
    v_lshlrev_b32 v7, 12, v3
    v_lshl_add_u32 v7, v4, 3, v7""")
    for e in range(8):
        a(f"s_add_u32 s{32+e}, s25, {(16*(e//4) + e%4)*1024}")
    a(f"""s_mov_b32 s10, {1376*1024}
    v_lshlrev_b32 v8, 10, v5
    v_lshl_add_u32 v8, v3, 8, v8
    v_lshl_add_u32 v8, v6, 6, v8
    s_mul_i32 s26, s3, {43*4096}
    s_lshl_b32 s27, s21, 12
    s_add_u32 s26, s26, s27
    s_add_u32 s26, s26, {hex(WD_OFF)}""")
    a.label("K2_PACK")
    a(f"""s_waitcnt lgkmcnt(0)
    s_mov_b32 s8, s4
    s_mov_b32 s9, s5
    s_mov_b32 s11, 0x00020000""")
    srd(a, 12, 6, 7, WS_SIZE)
    for e in range(8):
        a(f"buffer_load_dwordx2 v[{16+2*e}:{17+2*e}], v7, s[8:11], s{32+e} offen")
    a("""s_mov_b32 s41, 0x05040100
    s_mov_b32 s42, 0x07060302
    s_waitcnt vmcnt(0)""")
    for tau in range(4):
        for ep in range(4):
            a(f"v_perm_b32 v{32+4*tau+ep}, v{16+2*(2*ep+1)+tau//2}, v{16+2*(2*ep)+tau//2}, s{41+tau%2}")
        a(f"buffer_store_dwordx4 v[{32+4*tau}:{35+4*tau}], v8, s[12:15], s26 offen offset:{16*tau}")
    if Asm.STAMP: a("s_waitcnt vmcnt(0)")
    a.stamp_end(1, 8)
    a.label("K2_END")
    a("s_endpgm")
```

```python
from common import *
from asmlib import *
from gen_k1 import srd, tab_srd

K3_BLOCK = 512
L_G1, L_MOD, L_ST = 65536, 73728, 79872
K3_LDS = L_ST + 4096
K3_VGPR = 256
K3_ACC = 256

class VM:
    def __init__(self): self.ops = []
    def issue(self, tag): self.ops.append(tag)
    def wait(self, a, tag):
        last = max(i for i, t in enumerate(self.ops) if t == tag)
        n = len(self.ops) - 1 - last
        a(f"s_waitcnt vmcnt({min(n, 63)})")
    def copy(self):
        v = VM(); v.ops = list(self.ops); return v

def k3(a):
    a.label("k3_kernel")
    a.stamp(0, True); a.stamp(1)
    XR, ACC, FR, E = 16, 48, 112, 160
    a(f"""s_cmp_ge_u32 s2, 256
    s_cbranch_scc1 K3_END
    s_load_dwordx2 s[4:5], s[0:1], 0
    s_load_dwordx2 s[6:7], s[0:1], 88
    v_lshrrev_b32 v1, 6, v0
    v_and_b32 v2, 63, v0              ; lane
    v_lshlrev_b32 v3, 4, v2           ; lane*16
    v_readfirstlane_b32 s3, v1        ; wave
    s_and_b32 s20, s2, 3
    s_bfe_u32 s21, s2, 0x30003
    s_lshl_b32 s21, s21, 2
    s_add_u32 s20, s20, s21
    s_bfe_u32 s21, s2, 0x10002
    s_lshr_b32 s22, s2, 6
    s_lshl_b32 s22, s22, 1
    s_add_u32 s21, s21, s22           ; s21 = f
    v_and_b32 v4, 3, v2
    v_lshlrev_b32 v4, 9, v4
    v_lshrrev_b32 v5, 2, v2
    v_lshl_add_u32 v4, v5, 4, v4
    s_lshl_b32 s22, s20, 16
    s_lshl_b32 s23, s3, 13
    s_add_u32 s22, s22, s23
    s_add_u32 s22, s22, {hex(VBUF_OFF)}
    s_sub_u32 s24, s22, 768
    s_add_u32 s25, s22, 4096
    s_add_u32 s26, s24, 4096
    s_mov_b32 m0, s23
    s_waitcnt lgkmcnt(0)""")
    srd(a, 12, 6, 7, WS_SIZE)
    vm = VM()
    for grp in range(2):
        if grp == 1: a("s_add_u32 s23, s23, 4096\ns_mov_b32 m0, s23")
        for i in range(4):
            so = (22 if i % 2 == 0 else 24) if grp == 0 else (25 if i % 2 == 0 else 26)
            a(f"buffer_load_dwordx4 v4, s[12:15], s{so} offen offset:{1024*i} lds"); vm.issue("dma")
    tab_srd(a, 16, "TAB_G1", 8192)
    srd(a, 8, 4, 5, 2048 * 1024)
    a(f"""s_lshl_b32 s23, s3, 10
    s_add_u32 s24, s23, {L_G1}
    s_mov_b32 m0, s24
    s_add_u32 s25, s23, 4096
    buffer_load_dwordx4 v3, s[16:19], s23 offen lds
    s_add_u32 s24, s23, {L_MOD}
    s_cmp_lt_u32 s3, 6
    s_cbranch_scc0 K3_NOMOD
    s_mov_b32 m0, s24
    s_nop 0
    buffer_load_dwordx4 v3, s[12:15], s25 offen lds""")
    vm.issue("dma")
    a.label("K3_NOMOD")
    a(f"""v_and_b32 v5, 31, v0              ; j
    v_bfe_u32 v6, v0, 5, 1            ; h'
    v_lshlrev_b32 v7, 15, v5
    v_lshl_add_u32 v7, v6, 5, v7
    v_lshl_add_u32 v7, v1, 6, v7      ; x voff
    s_lshl_b32 s26, s20, 10
    s_add_u32 s27, s26, 0x100000""")
    for st in range(2):
        for pm in range(2):
            for z in range(2):
                d = XR + 16 * st + 8 * pm + 4 * z
                a(f"buffer_load_dwordx4 v[{d}:{d+3}], v7, s[8:11], s{26+st} offen offset:{512*pm+16*z}"); vm.issue("x")
    a(f"""s_mul_i32 s28, s21, 11
    s_cmp_eq_u32 s21, 7
    s_subb_u32 s28, s28, 0            ; ft0
    s_add_u32 s28, s28, s3            ; ftA
    s_add_u32 s29, s28, 8             ; ftB
    s_lshl_b32 s30, s28, 15
    s_add_u32 s30, s30, {hex(WGU_OFF)}""")
    for t in range(2):
        for gu in range(2):
            for kb in range(4):
                a(f"s_add_u32 s{32+8*t+4*gu+kb}, s30, {t*8*32768 + gu*16384 + kb*4096}")
    a("""s_cmp_ge_u32 s21, 6
    s_cselect_b32 s31, 2, 3
    s_cmp_lt_u32 s3, s31
    s_cselect_b32 s31, 1, 0
    s_cbranch_scc0 K3_E1""")
    late = list(range(XR, ACC, 16)) + [FR + 32]
    def slots(nt):
        sz = 8 * nt
        s = list(range(E, 256, sz))
        ne = len(s)
        for b in late:
            s += list(range(b, b + 16, sz))
        return s, ne
    def wload(nt, ks, reg, vmx):
        for t in range(nt):
            for gu in range(2):
                d = reg + 8 * t + 4 * gu
                a(f"buffer_load_dwordx4 v[{d}:{d+3}], v3, s[12:15], s{32+8*t+4*gu+ks//4} offen offset:{1024*(ks%4)}")
                vmx.issue(("w", ks))
    vms = {}
    for nt in (2, 1):
        if nt == 1: a.label("K3_E1")
        s, ne = slots(nt)
        vx = vm.copy()
        for ks in range(ne): wload(nt, ks, s[ks], vx)
        vms[nt] = vx
        if nt == 2: a("s_branch K3_E2")
    a.label("K3_E2")
    a.stamp(2)
    assert len(vms[1].ops) == len(vms[2].ops)
    a(f"""v_and_b32 v8, 3, v0               ; c
    v_bfe_u32 v9, v0, 2, 2            ; rr
    v_bfe_u32 v10, v0, 4, 1           ; G%2 = ic/4
    v_and_b32 v11, 1, v8              ; ic%2
    v_lshl_add_u32 v10, v11, 1, v10
    v_lshl_add_u32 v10, v1, 2, v10    ; chunk
    v_lshlrev_b32 v10, 6, v10
    v_lshl_add_u32 v10, v9, 4, v10
    v_lshrrev_b32 v8, 1, v8           ; (ic/2)%2
    v_lshl_add_u32 v10, v8, 3, v10
    v_lshl_add_u32 v8, v6, 12, v10
    v_lshlrev_b32 v9, 6, v6
    v_lshl_add_u32 v9, v1, 7, v9
    v_lshlrev_b32 v10, 3, v2
    v_lshl_add_u32 v11, v1, 9, v10
    v_bfe_u32 v12, v0, 4, 1
    v_lshlrev_b32 v12, 14, v12
    v_lshl_add_u32 v12, v1, 10, v12
    v_lshl_add_u32 v12, v6, 9, v12
    v_and_b32 v13, 15, v0
    v_lshl_add_u32 v12, v13, 4, v12
    v_mov_b32 v13, 0x3f803f80""")
    vms[2].wait(a, "dma")
    a("s_barrier")
    a.stamp(3)
    acc = lambda p, st: f"v[{ACC+32*st+16*p}:{ACC+32*st+16*p+15}]"
    def rd(ks):
        b = FR + 16 * (ks % 3)
        for p in range(2):
            for hf in range(2):
                a(f"ds_read_b64_tr_b16 v[{b+4*p+2*hf}:{b+4*p+2*hf+1}], v8 offset:{32768*p + 8192*ks + 2048*hf}")
        for st in range(2):
            a(f"ds_read_b128 v[{b+8+4*st}:{b+8+4*st+3}], v3 offset:{L_G1 - 65536 + 1024*(4*st+ks) + 65536}" if False else
              f"ds_read_b128 v[{b+8+4*st}:{b+8+4*st+3}], v14 offset:{1024*(4*st+ks)}")
    a(f"v_add_u32 v14, {L_G1}, v3\nv_add_u32 v9, {L_MOD}, v9\nv_add_u32 v10, {L_ST}, v10\nv_add_u32 v11, {L_ST}, v11")
    rd(0); rd(1); rd(2)
    for ks in range(4):
        a(f"s_waitcnt lgkmcnt({[12, 12, 6+8, 8][ks] if False else 0})" if False else f"s_waitcnt lgkmcnt({(12, 12, 6, 0)[ks]})")
        b = FR + 16 * (ks % 3)
        for st in range(2):
            for p in range(2):
                a(f"v_mfma_f32_32x32x16_bf16 {acc(p, st)}, v[{b+4*p}:{b+4*p+3}], v[{b+8+4*st}:{b+8+4*st+3}], {'0' if ks == 0 else acc(p, st)}")
        if ks == 0: rd(3)
    GA = FR + 16
    for pm in range(2):
        for z in range(4):
            a(f"ds_read_b128 v[{GA+16*pm+4*z}:{GA+16*pm+4*z+3}], v9 offset:{1024*pm + 16*z}")
    vms[2].wait(a, "x")
    a("s_waitcnt lgkmcnt(0)")
    a.stamp(4)
    T = FR
    a("v_mov_b32 v4, 0\nv_mov_b32 v5, 0\nv_mov_b32 v14, 0\nv_mov_b32 v15, 0")
    S = {0: (4, 5), 1: (14, 15)}
    for st in range(2):
        for k in range(8):
            a0 = ACC + 32 * st + 2 * k; a1 = a0 + 16
            xp = XR + 16 * st + k; xm = xp + 8
            t = T + 8 * (k % 2)
            a(f"""v_lshlrev_b32 v{t}, 16, v{xp}
            v_and_b32 v{t+1}, 0xffff0000, v{xp}
            v_lshlrev_b32 v{t+2}, 16, v{xm}
            v_and_b32 v{t+3}, 0xffff0000, v{xm}
            v_pk_add_f32 v[{t+4}:{t+5}], v[{a0}:{a0+1}], v[{a1}:{a1+1}]
            v_pk_add_f32 v[{t+6}:{t+7}], v[{a0}:{a0+1}], v[{a1}:{a1+1}] neg_lo:[0,1] neg_hi:[0,1]
            v_pk_fma_f32 v[{a0}:{a0+1}], v[{t+4}:{t+5}], v[{GA+2*k}:{GA+2*k+1}], v[{t}:{t+1}]
            v_pk_fma_f32 v[{a1}:{a1+1}], v[{t+6}:{t+7}], v[{GA+16+2*k}:{GA+16+2*k+1}], v[{t+2}:{t+3}]
            v_cvt_pk_bf16_f32 v{xp}, v{a0}, v{a0+1}
            v_cvt_pk_bf16_f32 v{xm}, v{a1}, v{a1+1}
            v_dot2c_f32_bf16 v{S[st][0]}, v{xp}, v13
            v_dot2c_f32_bf16 v{S[st][1]}, v{xp}, v{xp}
            v_dot2c_f32_bf16 v{S[st][0]}, v{xm}, v13
            v_dot2c_f32_bf16 v{S[st][1]}, v{xm}, v{xm}""")
    a(f"""v_permlane32_swap_b32 v4, v14
    v_permlane32_swap_b32 v5, v15
    v_add_f32 v4, v4, v14
    v_add_f32 v5, v5, v15
    ds_write_b64 v11, v[4:5]""")
    a(f"""s_cmp_eq_u32 s3, s21
    s_cbranch_scc0 K3_NOXN
    s_add_u32 s26, s26, {hex(XN_OFF)}
    s_add_u32 s27, s27, {hex(XN_OFF)}""")
    for st in range(2):
        for pm in range(2):
            for z in range(2):
                d = XR + 16 * st + 8 * pm + 4 * z
                a(f"buffer_store_dwordx4 v[{d}:{d+3}], v7, s[12:15], s{26+st} offen offset:{512*pm+16*z}")
    a.label("K3_NOXN")
    CB, SB = FR + 16, FR + 32
    def rdp(pm):
        for z in range(4):
            a(f"ds_read_b128 v[{CB+4*z}:{CB+4*z+3}], v9 offset:{4096 + 1024*pm + 16*z}")
            a(f"ds_read_b128 v[{SB+4*z}:{SB+4*z+3}], v9 offset:{2048 + 1024*pm + 16*z}")
    rdp(0)
    a("s_waitcnt lgkmcnt(8)\ns_barrier")
    a.stamp(5)
    for w in range(8):
        a(f"ds_read_b64 v[{T+2*w}:{T+2*w+1}], v10 offset:{512*w}")
    a(f"""s_waitcnt lgkmcnt(0)
    v_pk_add_f32 v[{T}:{T+1}], v[{T}:{T+1}], v[{T+2}:{T+3}]
    v_pk_add_f32 v[{T+4}:{T+5}], v[{T+4}:{T+5}], v[{T+6}:{T+7}]
    v_pk_add_f32 v[{T+8}:{T+9}], v[{T+8}:{T+9}], v[{T+10}:{T+11}]
    v_pk_add_f32 v[{T+12}:{T+13}], v[{T+12}:{T+13}], v[{T+14}:{T+15}]
    v_pk_add_f32 v[{T}:{T+1}], v[{T}:{T+1}], v[{T+4}:{T+5}]
    v_pk_add_f32 v[{T+8}:{T+9}], v[{T+8}:{T+9}], v[{T+12}:{T+13}]
    v_pk_add_f32 v[{T}:{T+1}], v[{T}:{T+1}], v[{T+8}:{T+9}]
    v_mul_f32 v4, 0x3b000000, v{T}
    v_mul_f32 v5, 0x3b000000, v{T+1}
    v_fma_f32 v5, -v4, v4, v5
    v_max_f32 v5, 0, v5
    v_cvt_pk_bf16_f32 v14, v4, v5
    v_lshlrev_b32 v4, 16, v14
    v_and_b32 v5, 0xffff0000, v14
    v_add_f32 v5, 0x3727c5ac, v5
    v_cvt_pk_bf16_f32 v5, v5, v5
    v_lshlrev_b32 v5, 16, v5
    v_sqrt_f32 v5, v5
    v_cvt_pk_bf16_f32 v5, v5, v5
    v_lshlrev_b32 v5, 16, v5
    v_rcp_f32 v5, v5
    v_mul_f32 v4, v4, v5
    v_sub_f32 v4, 0, v4               ; -m*rstd
    v_mov_b32 v14, v4
    v_mov_b32 v15, v5
    v_permlane32_swap_b32 v4, v14
    v_permlane32_swap_b32 v5, v15""")
    for pm in range(2):
        for st in range(2):
            sp = "v[4:5]" if st == 0 else "v[14:15]"
            for z in range(2):
                ob = T + 4 * ((2 * st + z) % 4)
                for k in range(4):
                    kk = 4 * z + k
                    ar = ACC + 32 * st + 16 * pm + 2 * kk
                    a(f"""v_pk_fma_f32 v[{ar}:{ar+1}], v[{ar}:{ar+1}], {sp}, {sp} op_sel:[0,1,0] op_sel_hi:[1,1,0]
                    v_pk_fma_f32 v[{ar}:{ar+1}], v[{ar}:{ar+1}], v[{CB+2*kk}:{CB+2*kk+1}], v[{SB+2*kk}:{SB+2*kk+1}]
                    v_cvt_pk_bf16_f32 v{ob+k}, v{ar}, v{ar+1}""")
                a(f"ds_write_b128 v12, v[{ob}:{ob+3}] offset:{32768*st + 8192*pm + 256*z}")
        if pm == 0:
            rdp(1); a("s_waitcnt lgkmcnt(0)")
    a(f"""s_mul_i32 s22, s20, {43*4096}
    s_add_u32 s22, s22, {hex(HM_OFF)}
    s_lshr_b32 s23, s28, 1
    s_lshl_b32 s23, s23, 12
    s_and_b32 s24, s28, 1
    s_lshl_b32 s24, s24, 3
    s_add_u32 s22, s22, s23
    s_add_u32 s22, s22, s24
    s_add_u32 s23, s22, 0x4000
    v_add_u32 v4, 0x8000, v3
    s_cmp_eq_u32 s31, 1
    s_waitcnt lgkmcnt(0)
    s_barrier
    s_cbranch_scc0 K3_M1""")
    BF = FR
    for nt in (2, 1):
        if nt == 1: a.label("K3_M1")
        a.stamp(6)
        s, ne = slots(nt)
        vx = vms[nt]
        ns = len(s)
        nxt = ne
        def rdb(ks):
            b = BF + 16 * (ks % 2)
            for mt in range(4):
                a(f"ds_read_b128 v[{b+4*mt}:{b+4*mt+3}], v{3 if mt < 2 else 4} offset:{16384*(mt%2) + 1024*ks}")
        rdb(0)
        while nxt < min(ns, 16):
            wload(nt, nxt, s[nxt], vx); nxt += 1
        for ks in range(16):
            if ks < 15: rdb(ks + 1)
            vx.wait(a, ("w", ks))
            a(f"s_waitcnt lgkmcnt({4 if ks < 15 else 0})")
            b = BF + 16 * (ks % 2); wr = s[ks % ns]
            for mt in range(4):
                for t in range(nt):
                    for gu in range(2):
                        d = ACC + 32 * t + 16 * gu + 4 * mt
                        w_ = wr + 8 * t + 4 * gu
                        a(f"v_mfma_f32_16x16x32_bf16 v[{d}:{d+3}], v[{w_}:{w_+3}], v[{b+4*mt}:{b+4*mt+3}], {'0' if ks == 0 else f'v[{d}:{d+3}]'}")
            if nxt < 16:
                wload(nt, nxt, s[nxt % ns], vx); nxt += 1
        a.stamp(7)
        for t in range(nt):
            for mt in range(4):
                g = ACC + 32 * t + 4 * mt; u = g + 16
                o = E + 2 * (4 * t + mt)
                a(f"""v_pk_mul_f32 v[{g}:{g+1}], v[{g}:{g+1}], v[{u}:{u+1}]
                v_pk_mul_f32 v[{g+2}:{g+3}], v[{g+2}:{g+3}], v[{u+2}:{u+3}]
                v_cvt_pk_bf16_f32 v{o}, v{g}, v{g+1}
                v_cvt_pk_bf16_f32 v{o+1}, v{g+2}, v{g+3}
                buffer_store_dwordx2 v[{o}:{o+1}], v3, s[12:15], s{22+t} offen offset:{1024*mt}""")
        a.stamp(8)
        if Asm.STAMP: a("s_waitcnt vmcnt(0)")
        a.stamp_end(2, 8)
        a("s_endpgm")
    a.label("K3_END")
    a("s_endpgm")
```

```python
from common import *
from asmlib import *
from gen_k1 import srd
from gen_k3 import VM

K4_BLOCK = 256
K4_LDS = 4 * 3 * 4096
K4_VGPR = 512
K4_ACC = 256
NKS = 11
DEPTH = 7
def reg(r, n):
    return f"v[{r}:{r+n-1}]" if r < 256 else f"a[{r-256}:{r-256+n-1}]"
def k4(a):
    a.label("k4_kernel")
    a.stamp(0, True); a.stamp(1)
    ACC = 32
    RING = 96
    a(f"""s_cmp_ge_u32 s2, 256
    s_cbranch_scc1 K4_END
    s_load_dwordx2 s[4:5], s[0:1], 72
    s_load_dwordx2 s[6:7], s[0:1], 88
    v_lshrrev_b32 v1, 6, v0
    v_and_b32 v2, 63, v0
    v_lshlrev_b32 v3, 4, v2
    v_readfirstlane_b32 s3, v1        ; kq
    s_and_b32 s20, s2, 7
    s_lshr_b32 s21, s2, 6
    s_lshl_b32 s21, s21, 3
    s_add_u32 s20, s20, s21           ; m
    s_bfe_u32 s21, s2, 0x30003        ; nt
    s_mul_i32 s22, s3, {NKS*4096}
    s_mul_i32 s23, s20, {43*4096}
    s_add_u32 s23, s23, s22
    s_add_u32 s23, s23, {hex(HM_OFF)}
    s_mul_i32 s24, s21, {43*4096}
    s_add_u32 s24, s24, s22
    s_add_u32 s24, s24, {hex(WD_OFF)}""")
    for mu in range(4):
        a(f"""s_add_u32 s25, s3, {mu}
        s_and_b32 s25, s25, 3
        s_lshl_b32 s25, s25, 10
        v_add_u32 v{4+mu}, s25, v3""")
    a("s_waitcnt lgkmcnt(0)")
    srd(a, 12, 6, 7, WS_SIZE)
    srd(a, 8, 4, 5, 2048 * 1024)
    vm = VM()
    def load(i):
        b = RING + 32 * i
        if i == NKS - 1:
            a(f"""s_cmp_eq_u32 s3, 3
            s_cmov_b32 s23, {hex(OOB)}
            s_cmov_b32 s24, {hex(OOB)}""")
        for t in range(4):
            a(f"buffer_load_dwordx4 {reg(b+4*t, 4)}, v3, s[12:15], s24 offen offset:{1024*t}"); vm.issue(i)
            a(f"buffer_load_dwordx4 {reg(b+16+4*t, 4)}, v{4+t}, s[12:15], s23 offen"); vm.issue(i)
        a("s_add_u32 s23, s23, 4096\ns_add_u32 s24, s24, 4096")
    for i in range(DEPTH): load(i)
    a.stamp(2)
    a(f"""v_and_b32 v8, 15, v0
    v_lshl_add_u32 v8, v1, 4, v8      ; s1
    v_lshlrev_b32 v8, 15, v8
    v_bfe_u32 v9, v0, 4, 2            ; q
    v_lshl_add_u32 v8, v9, 5, v8
    s_lshl_b32 s26, s20, 10
    s_lshl_b32 s27, s21, 7
    s_add_u32 s26, s26, s27
    s_add_u32 s27, s26, {hex(XN_OFF)}
    v_lshlrev_b32 v9, 6, v9
    s_lshl_b32 s28, s21, 8
    s_add_u32 s28, s28, {5*2048}""")
    for i in range(NKS):
        vm.wait(a, i)
        if i == 0: a.stamp(3)
        if i == 5: a.stamp(4)
        b = RING + 32 * i
        for mu in range(4):
            for t in range(4):
                d = ACC + 16 * mu + 4 * t
                a(f"v_mfma_f32_16x16x32_bf16 v[{d}:{d+3}], {reg(b+4*t, 4)}, {reg(b+16+4*mu, 4)}, {'0' if i == 0 else f'v[{d}:{d+3}]'}")
        if i + DEPTH < NKS: load(i + DEPTH)
        if i + DEPTH == NKS:
            XN, GB = 448, 456
            for z in range(2):
                a(f"buffer_load_dwordx4 v[{10+4*z+2}:{10+4*z+5}], v8, s[12:15], s27 offen offset:{16*z}"); vm.issue("e")
            for z in range(4):
                a(f"buffer_load_dwordx4 v[{RING+4*z}:{RING+4*z+3}], v9, s[12:15], s28 offen offset:{16*z}"); vm.issue("e")
    a.stamp(5)
    for mu in range(1, 4):
        a(f"""s_add_u32 s25, s3, {mu}
        s_and_b32 s25, s25, 3
        s_mul_i32 s25, s25, 12288
        v_add_u32 v{4+mu}, s25, v3""")
    for mu in range(1, 4):
        for t in range(4):
            d = ACC + 16 * mu + 4 * t
            a(f"ds_write_b128 v{4+mu}, v[{d}:{d+3}] offset:{(mu-1)*4096 + 1024*t}")
    a(f"""s_mul_i32 s25, s3, 12288
    v_add_u32 v4, s25, v3
    s_waitcnt lgkmcnt(0)
    s_barrier""")
    a.stamp(6)
    R2 = RING + 32
    for k in range(12):
        a(f"ds_read_b128 v[{R2+4*k}:{R2+4*k+3}], v4 offset:{1024*k}")
    a("s_waitcnt vmcnt(0)")
    XU = R2 + 48
    for k in range(8):
        a(f"v_lshlrev_b32 v{XU+2*k}, 16, v{12+k}\nv_and_b32 v{XU+2*k+1}, 0xffff0000, v{12+k}")
    a("s_waitcnt lgkmcnt(0)")
    for k in range(8):
        d = ACC + 2 * k
        a(f"""v_pk_add_f32 v[{d}:{d+1}], v[{d}:{d+1}], v[{R2+2*k}:{R2+2*k+1}]
        v_pk_add_f32 v[{R2+16+2*k}:{R2+16+2*k+1}], v[{R2+16+2*k}:{R2+16+2*k+1}], v[{R2+32+2*k}:{R2+32+2*k+1}]
        v_pk_add_f32 v[{d}:{d+1}], v[{d}:{d+1}], v[{R2+16+2*k}:{R2+16+2*k+1}]
        v_pk_fma_f32 v[{d}:{d+1}], v[{d}:{d+1}], v[{RING+2*k}:{RING+2*k+1}], v[{XU+2*k}:{XU+2*k+1}]
        v_cvt_pk_bf16_f32 v{20+k}, v{d}, v{d+1}""")
    a("""buffer_store_dwordx4 v[20:23], v8, s[8:11], s26 offen
    buffer_store_dwordx4 v[24:27], v8, s[8:11], s26 offen offset:16""")
    a.stamp(7)
    if Asm.STAMP: a("s_waitcnt vmcnt(0)")
    a.stamp_end(3, 4)
    a.label("K4_END")
    a("s_endpgm")
```

```python
import numpy as np
def bf2f(u): return (np.asarray(u).astype(np.uint32) << 16).view(np.float32)
def f2bf(x):
    x = np.ascontiguousarray(x, dtype=np.float32)
    u = x.view(np.uint32).astype(np.uint64)
    r = (u + 0x7FFF + ((u >> 16) & 1)) >> 16
    return r.astype(np.uint16)
def rb(x): return bf2f(f2bf(x))

MOD_OFF   = 0x0
CA1K_OFF  = 0x4000
SA64K_OFF = 0x5000
CSB_OFF   = 0x8000
FLAG_OFF  = 0x10000
ABUF_OFF  = 0x100000
WF_OFF    = 0x300000
VBUF_OFF  = 0x600000
WGU_OFF   = 0x800000
WD_OFF    = 0xB00000
XN_OFF    = 0xD00000
HM_OFF    = 0x1000000
WS_SIZE   = 0x2000000
OOB       = 0x40000000

def d2_of(cc, e):
    return 8 * cc + 2 * (e % 4) + e // 4

def frag32(fn):
    out = np.zeros((64, 8), np.float64)
    for l in range(64):
        for e in range(8):
            out[l, e] = fn(l % 32, l // 32, e)
    return out
def frag16(fn):
    out = np.zeros((64, 8), np.float64)
    for l in range(64):
        for e in range(8):
            out[l, e] = fn(l % 16, l // 16, e)
    return out
PI2 = 2 * np.pi
def tab_F1():
    fr = []
    for mt in range(4):
        for ks in range(2):
            def fn(i, q, e):
                s1 = 32 * ks + 16 * (e // 4) + 4 * q + e % 4
                k1p = 16 * mt + i; j, c = k1p // 2, k1p % 2
                if j == 0: return 1.0 if c == 0 else (-1.0) ** s1
                return np.cos(PI2 * s1 * j / 64) if c == 0 else -np.sin(PI2 * s1 * j / 64)
            fr.append(frag16(fn))
    return f2bf(np.stack(fr))
def tab_G1():
    fr = []
    for st in range(2):
        for ks in range(4):
            def fn(j, h, e):
                k1p = 16 * ks + 8 * h + e
                slot, c = k1p // 2, k1p % 2
                s1 = 32 * st + j
                if slot == 0: v = 1.0 if c == 0 else (-1.0) ** s1
                else: v = 2 * np.cos(PI2 * s1 * slot / 64) if c == 0 else -2 * np.sin(PI2 * s1 * slot / 64)
                return v / 2048
            fr.append(frag32(fn))
    return f2bf(np.stack(fr))
def tab_TA(p):
    fr = []
    for f in (np.cos, np.sin):
        fr.append(frag16(lambda j, q, e: f(PI2 * (8 * q + e) * (2 * j + p) / 32)))
    return np.stack(fr).astype(np.float32)
def tab_TBf(p, W):
    fr = []
    for mt in range(2):
        def fn(i, q, e):
            kA = 8 * mt + 2 * (i // 4) + (i % 4) // 2; cp = i % 2
            d1 = 4 * q + e // 2; c = e % 2
            ph = PI2 * d1 * (32 * kA + 2 * W + p) / 512
            if cp == 0: return np.cos(ph) if c == 0 else np.sin(ph)
            return -np.sin(ph) if c == 0 else np.cos(ph)
        fr.append(frag16(fn))
    return f2bf(np.stack(fr))
def tab_TBi(p, W):
    fr = []
    for cp in range(2):
        def fn(j, q, e):
            mt, b, c = e // 4, (e // 2) % 2, e % 2
            kA = 8 * mt + 2 * q + b
            ph = PI2 * j * (32 * kA + 2 * W + p) / 512
            if cp == 0: v_ = np.cos(ph) if c == 0 else -np.sin(ph)
            else: v_ = -(np.sin(ph) if c == 0 else np.cos(ph))
            return v_ / 16
        fr.append(frag16(fn))
    return f2bf(np.stack(fr))
def tab_TAi(p):
    fr = []
    for v in range(2):
        def fn(j, h, e):
            d2, cp = j % 16, j // 16
            kBi = 8 * v + 4 * h + e // 2; c = e % 2
            ph = PI2 * d2 * (2 * kBi + p) / 32
            if cp == 0: v_ = np.cos(ph) if c == 0 else np.sin(ph)
            else: v_ = np.sin(ph) if c == 0 else -np.cos(ph)
            return v_ / 32
        fr.append(frag32(fn))
    return f2bf(np.stack(fr))
```

```python
from common import *
from asmlib import *

def srd(a, d, lo, hi, nbytes):
    a(f"""s_mov_b32 s{d}, s{lo}
    s_mov_b32 s{d+1}, s{hi}
    s_mov_b32 s{d+2}, {hex(nbytes)}
    s_mov_b32 s{d+3}, 0x00020000""")
def tab_srd(a, d, label, nbytes):
    a(f"""s_getpc_b64 s[{d}:{d+1}]
    s_add_u32 s{d}, s{d}, {label}@rel32@lo+4
    s_addc_u32 s{d+1}, s{d+1}, {label}@rel32@hi+12
    s_mov_b32 s{d+2}, {hex(nbytes)}
    s_mov_b32 s{d+3}, 0x00020000""")

K1_MAIN, K1_WF, K1_GEMV, K1_WARM = 128, 66, 64, 32
K1_GRID = K1_MAIN + K1_WF + K1_GEMV + K1_WARM
K1_LDS = 40960
K1_BLOCK = 512
K1_VGPR = 96
MIMIC1 = True
RS = 288

def k1(a):
    a.label("k1_kernel")
    a.stamp(0, True); a.stamp(1)
    a(f"""s_cmp_ge_u32 s2, {K1_GRID}
    s_cbranch_scc1 K1_END
    s_load_dwordx2 s[6:7], s[0:1], 88
    v_lshrrev_b32 v1, 6, v0           ; wave
    v_and_b32 v2, 63, v0              ; lane
    s_cmp_ge_u32 s2, {K1_MAIN + K1_WF}
    v_readfirstlane_b32 s3, v1
    s_cbranch_scc1 K1_GEMV
    s_cmp_ge_u32 s2, {K1_MAIN}
    s_cbranch_scc1 K1_WF""")
    X = 16
    F = 48
    a(f"""s_load_dwordx2 s[4:5], s[0:1], 0
    s_and_b32 s20, s2, 3
    s_bfe_u32 s21, s2, 0x30003
    s_lshl_b32 s21, s21, 2
    s_add_u32 s20, s20, s21          ; s20 = s2v
    s_bfe_u32 s21, s2, 0x10002
    s_lshr_b32 s22, s2, 6
    s_lshl_b32 s22, s22, 1
    s_add_u32 s21, s21, s22          ; s21 = cc
    s_lshl_b32 s22, s20, 10
    v_lshrrev_b32 v3, 3, v0          ; rho = 8w + l/8
    v_and_b32 v4, 7, v0              ; part
    v_lshlrev_b32 v5, 15, v3
    v_lshl_add_u32 v5, v4, 4, v5     ; voff_x""")
    for j in range(4):
        a(f"""s_add_u32 s{24+j}, s21, {j}
        s_and_b32 s{24+j}, s{24+j}, 3
        s_lshl_b32 s{24+j}, s{24+j}, 8
        s_add_u32 s{24+j}, s{24+j}, s22""")
    tab_srd(a, 16, "TAB_F1", 8192)
    a("""v_lshlrev_b32 v6, 4, v2
    s_and_b32 s28, s3, 3
    s_lshl_b32 s29, s28, 11
    s_waitcnt lgkmcnt(0)""")
    srd(a, 8, 4, 5, 2048 * 1024)
    for t in range(8):
        a(f"buffer_load_dwordx4 v[{X+4*t}:{X+4*t+3}], v5, s[8:11], s{24+t//2} offen offset:{128*(t%2)}")
    for f in range(2):
        a(f"buffer_load_dwordx4 v[{F+4*f}:{F+4*f+3}], v6, s[16:19], s29 offen offset:{1024*f}")
    srd(a, 12, 6, 7, WS_SIZE)
    a.stamp(2)
    a(f"""v_mul_u32_u24 v6, {RS}, v3
    v_lshl_add_u32 v6, v4, 4, v6
    v_lshrrev_b32 v7, 2, v2
    v_mul_u32_u24 v7, {RS}, v7
    v_and_b32 v8, 3, v2
    v_lshl_add_u32 v7, v8, 3, v7
    s_lshr_b32 s30, s3, 2             ; hh
    s_lshl_b32 s31, s30, 7
    v_add_u32 v7, s31, v7
    v_lshrrev_b32 v8, 4, v2           ; q
    v_lshlrev_b32 v8, 17, v8          ; 4q planes * 32768
    v_and_b32 v9, 15, v2
    v_lshl_add_u32 v8, v9, 3, v8
    s_lshl_b32 s32, s28, 19
    s_add_u32 s32, s32, s22
    s_lshl_b32 s33, s21, 8
    s_add_u32 s32, s32, s33
    s_add_u32 s32, s32, s31
    s_add_u32 s32, s32, {hex(ABUF_OFF)}
    s_add_u32 s33, s32, 0x8000
    s_add_u32 s34, s32, 0x10000
    s_add_u32 s35, s32, 0x18000
    v_mov_b32 v9, 0x3f803f80
    v_mov_b32 v10, 0
    v_mov_b32 v11, 0
    v_mov_b32 v12, 0
    v_mov_b32 v13, 0""")
    for t in range(8):
        a(f"s_waitcnt vmcnt({2 + 7 - t})")
        for j in range(4):
            r = X + 4 * t + j
            a(f"v_dot2c_f32_bf16 v{10 + (j%2)}, v{r}, v9")
            a(f"v_dot2c_f32_bf16 v{12 + (j%2)}, v{r}, v{r}")
    a.stamp(3)
    dpp = lambda r, m: f"v_add_f32_dpp v{r}, v{r}, v{r} {m} row_mask:0xf bank_mask:0xf"
    a(f"""v_add_f32 v10, v10, v11
    v_add_f32 v12, v12, v13
    {dpp(10, 'quad_perm:[1,0,3,2]')}
    {dpp(12, 'quad_perm:[1,0,3,2]')}
    {dpp(10, 'quad_perm:[2,3,0,1]')}
    {dpp(12, 'quad_perm:[2,3,0,1]')}
    {dpp(10, 'row_half_mirror')}
    {dpp(12, 'row_half_mirror')}
    v_mul_f32 v10, 0x3b000000, v10      ; mean
    v_mul_f32 v12, 0x3b000000, v12
    v_fma_f32 v12, -v10, v10, v12       ; var
    v_max_f32 v12, 0, v12""")
    T = X + 8
    unp = []
    for k in range(8):
        unp.append(f"v_lshlrev_b32 v{T+2*k}, 16, v{X+k}")
        unp.append(f"v_and_b32 v{T+2*k+1}, 0xffff0000, v{X+k}")
    if MIMIC1:
        chain = """v_cvt_pk_bf16_f32 v11, v10, v12
        v_lshlrev_b32 v10, 16, v11
        v_and_b32 v12, 0xffff0000, v11
        v_add_f32 v12, 0x3727c5ac, v12
        v_cvt_pk_bf16_f32 v12, v12, v12
        v_lshlrev_b32 v12, 16, v12
        v_sqrt_f32 v12, v12
        v_cvt_pk_bf16_f32 v12, v12, v12
        v_lshlrev_b32 v12, 16, v12
        v_rcp_f32 v12, v12""".split("\n")
    else:
        chain = ["v_add_f32 v12, 0x3727c5ac, v12", "v_rsq_f32 v12, v12"]
    while chain or unp:
        if chain: a(chain.pop(0))
        for _ in range(2):
            if unp: a(unp.pop(0))
    for k in range(8):
        t0 = T + 2 * k
        a(f"v_sub_f32 v{t0}, v{t0}, v10\nv_sub_f32 v{t0+1}, v{t0+1}, v10")
    if MIMIC1:
        for k in range(8):
            t0 = T + 2 * k
            a(f"v_cvt_pk_bf16_f32 v{t0+1}, v{t0}, v{t0+1}")
        for k in range(8):
            t0 = T + 2 * k
            a(f"v_lshlrev_b32 v{t0}, 16, v{t0+1}\nv_and_b32 v{t0+1}, 0xffff0000, v{t0+1}")
    for k in range(8):
        t0 = T + 2 * k
        a(f"v_mul_f32 v{t0}, v{t0}, v12\nv_mul_f32 v{t0+1}, v{t0+1}, v12")
        a(f"v_cvt_pk_bf16_f32 v{X+k}, v{t0}, v{t0+1}")
        if k % 4 == 3: a(f"ds_write_b128 v6, v[{X+k-3}:{X+k}] offset:{128*(k//4)}")
    a("s_waitcnt lgkmcnt(0)\ns_barrier")
    a.stamp(4)
    B = 56
    ACC = X + 8
    for ks in range(2):
        for tl in range(4):
            for hf in range(2):
                d = B + 8 * tl + 4 * ks + 2 * hf
                a(f"ds_read_b64_tr_b16 v[{d}:{d+1}], v7 offset:{(32*ks+16*hf)*RS + 32*tl}")
    a("s_waitcnt vmcnt(0)")
    for ks in range(2):
        for tl in range(4):
            n = 16 - 2 * (4 * ks + tl + 1)
            a(f"s_waitcnt lgkmcnt({n})")
            d = f"v[{ACC+4*tl}:{ACC+4*tl+3}]"
            a(f"v_mfma_f32_16x16x32_bf16 {d}, v[{F+4*ks}:{F+4*ks+3}], v[{B+8*tl+4*ks}:{B+8*tl+4*ks+3}], {'0' if ks == 0 else d}")
    for r in range(4):
        a(f"""v_cvt_pk_bf16_f32 v{X+2*r}, v{ACC+r}, v{ACC+4+r}
        v_cvt_pk_bf16_f32 v{X+2*r+1}, v{ACC+8+r}, v{ACC+12+r}
        buffer_store_dwordx2 v[{X+2*r}:{X+2*r+1}], v8, s[12:15], s{32+r} offen""")
    a.stamp(5)
    if Asm.STAMP: a("s_waitcnt vmcnt(0)")
    a.stamp_end(0, 8)
    a("s_endpgm")
    a.label("K1_WF")
    a(f"""s_load_dwordx4 s[16:19], s[0:1], 8      ; w_r, w_i
    s_sub_u32 s20, s2, {K1_MAIN}
    s_lshr_b32 s21, s20, 1            ; g
    s_and_b32 s22, s20, 1             ; t
    s_lshr_b32 s24, s3, 2             ; mt
    v_bfe_u32 v4, v0, 4, 4            ; j
    v_bfe_u32 v3, v0, 2, 2            ; q
    v_and_b32 v5, 3, v0               ; wq
    s_lshl_b32 s25, s22, 10
    s_add_u32 s25, s25, s21
    v_lshlrev_b32 v6, 6, v4
    v_add_u32 v6, s25, v6             ; k
    v_sub_u32 v7, 0x800, v6
    v_and_b32 v7, 0x7ff, v7           ; -k
    v_mul_u32_u24 v6, 514, v6
    v_mul_u32_u24 v7, 514, v7
    v_lshlrev_b32 v8, 7, v3
    v_lshl_add_u32 v8, v5, 4, v8      ; 128q + 16wq
    v_lshlrev_b32 v11, 12, v5         ; wq*4*1024
    v_lshl_add_u32 v11, v3, 8, v11
    v_lshl_add_u32 v11, v4, 4, v11
    s_lshl_b32 s25, s24, 3
    v_add_u32 v11, s25, v11
    v_cmp_eq_u32 s[48:49], 0, v8      ; q==0 && wq==0
    s_mov_b32 s41, 0x05040100
    s_mov_b32 s42, 0x07060302
    v_lshlrev_b32 v12, 4, v0
    v_lshlrev_b32 v13, 4, v2
    s_lshl_b32 s23, s21, 16
    s_lshl_b32 s25, s22, 10
    s_add_u32 s23, s23, s25
    s_lshl_b32 s25, s3, 11
    s_add_u32 s23, s23, s25
    s_add_u32 s23, s23, {hex(WF_OFF)}
    s_waitcnt lgkmcnt(0)""")
    srd(a, 8, 16, 17, 2048 * 514)
    srd(a, 44, 18, 19, 2048 * 514)
    srd(a, 12, 6, 7, WS_SIZE)
    Rr, Ii = 16, 24
    a("s_cmp_eq_u32 s24, 0\ns_cbranch_scc0 K1_WFM")
    for mt in range(2):
        if mt == 1: a.label("K1_WFM")
        if mt == 0: a("v_add_u32 v9, v6, v8")
        else: a(f"v_sub_u32 v9, v7, v8\nv_add_u32 v9, {498 - 64}, v9")
        for b in range(2):
            off = 64 * b if mt == 0 else 64 * (1 - b)
            a(f"buffer_load_dwordx4 v[{Rr+4*b}:{Rr+4*b+3}], v9, s[8:11], 0 offen offset:{off}")
            a(f"buffer_load_dwordx4 v[{Ii+4*b}:{Ii+4*b+3}], v9, s[44:47], 0 offen offset:{off}")
        o = "v7, s[%s], 0 offen" if mt == 0 else "v6, s[%s], 0 offen offset:512"
        a(f"""buffer_load_ushort v48, {o % '8:11'}
        buffer_load_ushort v49, {o % '44:47'}
        s_waitcnt vmcnt(0)""")
        a.stamp(3)
        a("v_lshlrev_b32 v48, 16, v48\nv_lshlrev_b32 v49, 16, v49")
        if mt == 0:
            a(f"v_lshlrev_b32 v52, 16, v{Rr}\nv_lshlrev_b32 v53, 16, v{Ii}\nv_add_f32 v48, v48, v52\nv_sub_f32 v49, v53, v49")
        else:
            a(f"v_and_b32 v52, 0xffff0000, v{Rr+3}\nv_and_b32 v53, 0xffff0000, v{Ii+3}\nv_add_f32 v48, v48, v52\nv_sub_f32 v49, v49, v53")
        a("v_mul_f32 v48, 0.5, v48\nv_mul_f32 v49, 0.5, v49\nv_cvt_pk_bf16_f32 v48, v48, v49")
        if mt == 1:
            for r in range(8): a(f"v_xor_b32 v{Ii+r}, 0x80008000, v{Ii+r}")
        for j in range(8):
            ob = 32 + 2 * j
            jj = j if mt == 0 else 7 - j
            for b in range(2):
                a(f"v_perm_b32 v{ob+b}, v{Ii+4*b+jj//2}, v{Rr+4*b+jj//2}, s{41 + jj%2}")
            if j == 0: a(f"v_cndmask_b32 v{ob}, v{ob}, v48, s[48:49]")
            a(f"ds_write_b64 v11, v[{ob}:{ob+1}] offset:{(j%2)*16384 + (j//2)*1024}")
        if mt == 0: a("s_branch K1_WFO")
    a.label("K1_WFO")
    a("s_waitcnt lgkmcnt(0)\ns_barrier")
    for i in range(4):
        a(f"ds_read_b128 v[{16+4*i}:{19+4*i}], v12 offset:{8192*i}")
    for i in range(4):
        a(f"s_waitcnt lgkmcnt({3-i})")
        a(f"buffer_store_dwordx4 v[{16+4*i}:{19+4*i}], v13, s[12:15], s23 offen\ns_add_u32 s23, s23, 16384")
    a.stamp(5)
    if Asm.STAMP: a("s_waitcnt vmcnt(0)")
    a.stamp_end(0, 8)
    a("s_endpgm")
    a.label("K1_GEMV")
    a(f"""s_sub_u32 s20, s2, {K1_MAIN + K1_WF}
    s_cmp_ge_u32 s20, {K1_GEMV}
    s_cbranch_scc1 K1_WARM
    s_cmp_ge_u32 s20, 32
    s_cselect_b32 s21, 16, 0
    s_add_u32 s20, s20, s21""")
    gemv(a, 8, "K1", 0)
    a.label("K1_WARM")
    a(f"""s_sub_u32 s20, s20, {K1_GEMV}
    s_lshr_b32 s20, s20, 3
    s_getpc_b64 s[16:17]
    s_add_u32 s16, s16, k2_kernel@rel32@lo+4
    s_addc_u32 s17, s17, k2_kernel@rel32@hi+12
    s_mov_b32 s18, CODE_END-k2_kernel
    s_mov_b32 s19, 0x00020000""")
    tab_srd(a, 8, "TAB_G1", 8192 + 16384 + 32 * 3072)
    a(f"""v_lshlrev_b32 v4, 4, v0
    s_lshl_b32 s21, s20, 13""")
    for i in range(2):
        a(f"buffer_load_dwordx4 v[8:11], v4, s[16:19], s21 offen\ns_add_u32 s21, s21, 0x8000")
    a("s_lshl_b32 s21, s20, 13")
    for i in range(4):
        a(f"buffer_load_dwordx4 v[8:11], v4, s[8:11], s21 offen\ns_add_u32 s21, s21, 0x8000")
    a("s_waitcnt vmcnt(0)")
    a.label("K1_END")
    a("s_endpgm")

def gemv(a, nw, pre, kern):
    nt = nw * 64; nrg = nt // 4; nit = 512 // nrg
    a(f"""s_load_dwordx4 s[16:19], s[0:1], 56     ; c, w_mod
    s_lshl_b32 s21, s20, 6
    v_and_b32 v1, 3, v0                     ; cg
    v_lshrrev_b32 v2, 2, v0                 ; rg
    v_mul_u32_u24 v3, 6144, v2
    v_lshl_add_u32 v3, v1, 4, v3
    v_lshlrev_b32 v4, 2, v0
    v_lshlrev_b32 v6, 1, v2
    s_waitcnt lgkmcnt(0)""")
    srd(a, 8, 16, 17, 1024)
    srd(a, 44, 18, 19, 512 * 6144)
    srd(a, 12, 6, 7, WS_SIZE)
    Wm, SC, AC = 16, 32, 40
    for it in range(nit):
        a(f"buffer_load_ushort v{SC+it}, v6, s[8:11], 0 offen offset:{2*nrg*it}")
    for it in range(nit):
        a(f"buffer_load_dwordx4 v[{Wm+4*it}:{Wm+4*it+3}], v3, s[44:47], s21 offen")
        if it < nit - 1: a(f"s_add_u32 s21, s21, {nrg*6144}")
    if pre == "K1":
        a(f"""s_cmp_eq_u32 s20, 0
        s_cbranch_scc0 K1_NOZ
        v_mov_b32 v8, 0
        v_mov_b32 v9, 0
        v_mov_b32 v10, 0
        v_mov_b32 v11, 0
        v_lshlrev_b32 v7, 4, v0
        s_mov_b32 s22, {hex(FLAG_OFF)}
        buffer_store_dwordx4 v[8:11], v7, s[12:15], s22 offen
        s_add_u32 s22, s22, 8192
        buffer_store_dwordx4 v[8:11], v7, s[12:15], s22 offen
        s_waitcnt vmcnt(0)""")
        a.label("K1_NOZ")
    for z in range(8): a(f"v_mov_b32 v{AC+z}, 0")
    a(f"s_waitcnt vmcnt({nit})")
    for it in range(nit):
        c = SC + it; t = 8 + it
        a(f"""v_lshlrev_b32 v{c}, 16, v{c}
        v_mul_f32 v{t}, 0xbfb8aa3b, v{c}
        v_exp_f32 v{t}, v{t}
        v_add_f32 v{t}, 1.0, v{t}
        v_rcp_f32 v{t}, v{t}
        v_mul_f32 v{c}, v{c}, v{t}
        v_cvt_pk_bf16_f32 v{c}, v{c}, v{c}
        v_and_b32 v{c+4}, 0xffff0000, v{c}
        v_and_b32 v{c}, 0xffff, v{c}""")
    for it in range(nit):
        a(f"s_waitcnt vmcnt({nit-1-it})")
        for z in range(4):
            a(f"v_dot2c_f32_bf16 v{AC+2*z}, v{Wm+4*it+z}, v{SC+it}")
            a(f"v_dot2c_f32_bf16 v{AC+2*z+1}, v{Wm+4*it+z}, v{SC+4+it}")
    a.stamp(3)
    a(f"""v_lshlrev_b32 v5, 5, v0
    ds_write_b128 v5, v[{AC}:{AC+3}] offset:4096
    ds_write_b128 v5, v[{AC+4}:{AC+7}] offset:4112
    v_and_b32 v6, 31, v0
    v_lshrrev_b32 v7, 5, v0
    v_lshlrev_b32 v8, 10, v7          ; 8 rgs * 128B
    v_lshl_add_u32 v8, v6, 2, v8
    v_add_u32 v8, 4096, v8
    s_waitcnt lgkmcnt(0)
    s_barrier""")
    add8 = """v_add_f32 v16, v16, v17
    v_add_f32 v18, v18, v19
    v_add_f32 v20, v20, v21
    v_add_f32 v22, v22, v23
    v_add_f32 v16, v16, v18
    v_add_f32 v20, v20, v22
    v_add_f32 v16, v16, v20"""
    for z in range(4):
        a(f"ds_read2_b32 v[{16+2*z}:{17+2*z}], v8 offset0:{64*z} offset1:{64*z+32}")
    a(f"""s_waitcnt lgkmcnt(0)
    {add8}
    ds_write_b32 v4, v16
    s_waitcnt lgkmcnt(0)
    s_barrier
    s_cmp_eq_u32 s3, 0
    s_cbranch_scc0 {pre}_END""")
    for z in range(nw // 2):
        a(f"ds_read2st64_b32 v[{16+2*z}:{17+2*z}], v4 offset0:{2*z} offset1:{2*z+1}")
    a("""s_lshr_b32 s21, s20, 4            ; part
    s_and_b32 s22, s20, 15
    s_lshl_b32 s22, s22, 5            ; d0
    v_add_u32 v5, s22, v6             ; d
    v_and_b32 v9, 15, v5              ; d1
    v_lshrrev_b32 v7, 4, v5           ; d2
    v_lshl_add_u32 v8, v9, 5, v7      ; idx = d1*32 + d2
    v_lshlrev_b32 v4, 2, v6
    s_waitcnt lgkmcnt(0)""")
    if nw == 16:
        for z in range(8): a(f"v_add_f32 v{16+z}, v{16+z}, v{24+z}")
    a(f"""{add8}
    v_mov_b32 v17, v16
    v_permlane32_swap_b32 v16, v17
    v_add_f32 v16, v16, v17
    v_cvt_pk_bf16_f32 v16, v16, v16
    v_lshlrev_b32 v16, 16, v16
    s_cmp_eq_u32 s21, 1
    s_cselect_b32 s23, 1.0, 0
    s_cmp_eq_u32 s21, 4
    s_cselect_b32 s23, 1.0, s23
    v_add_f32 v16, s23, v16
    v_cvt_pk_bf16_f32 v16, v16, v16
    v_lshlrev_b32 v16, 16, v16
    s_lshl_b32 s23, s20, 7
    buffer_store_dword v16, v4, s[12:15], s23 offen""")
    if pre == "K1":
        a(f"""s_cmp_eq_u32 s21, 1
        s_cbranch_scc0 K1_G2
        v_lshlrev_b32 v9, 2, v8
        s_movk_i32 s23, {hex(CA1K_OFF)}
        buffer_store_dword v16, v9, s[12:15], s23 offen""")
        a.label("K1_G2")
        a(f"""s_cmp_eq_u32 s21, 0
        s_cbranch_scc0 K1_G3
        v_mul_f32 v16, 0x42800000, v16
        v_lshrrev_b32 v16, 16, v16
        v_lshlrev_b32 v9, 1, v8
        s_movk_i32 s23, {hex(SA64K_OFF)}
        buffer_store_short v16, v9, s[12:15], s23 offen""")
        a.label("K1_G3")
    if Asm.STAMP: a("s_waitcnt vmcnt(0)")
    a.stamp_end(kern, nw)
    a("s_endpgm")
```

```python
from common import *
from asmlib import *
from gen_k1 import srd, tab_srd, gemv

K2_MAIN = 80
K2_WGU, K2_WD, K2_GEMV = 86, 43, 32
K2_GRID = K2_MAIN + K2_WGU + K2_WD + K2_GEMV
K2_BLOCK = 1024
AS = 1040
L_TA, L_TAI, L_TAB, L_CA, L_SA = 0, 4096, 6144, 8192, 10240
L_M1, L_M6 = 11264, 15360
L_X1 = 19456
L_A = L_X1 + 32768
L_X2 = L_A
K2_LDS = L_A + 64 * AS
K2_VGPR = 128

def k2(a):
    a.label("k2_kernel")
    a.stamp(0, True); a.stamp(1)
    a(f"""s_cmp_ge_u32 s2, {K2_GRID}
    s_cbranch_scc1 K2_END
    s_load_dwordx2 s[6:7], s[0:1], 88
    v_lshrrev_b32 v1, 6, v0
    v_and_b32 v2, 63, v0              ; lane
    v_lshlrev_b32 v3, 4, v2           ; lane*16
    v_readfirstlane_b32 s3, v1        ; wave W
    s_cmp_ge_u32 s2, {K2_MAIN}
    s_cbranch_scc1 K2_SIDE
    s_and_b32 s20, s2, 7
    s_lshr_b32 s21, s2, 4
    s_lshl_b32 s21, s21, 3
    s_add_u32 s20, s20, s21           ; g
    s_cmp_gt_u32 s20, 32
    s_cbranch_scc1 K2_END
    s_bfe_u32 s21, s2, 0x10003        ; p""")
    tab_srd(a, 16, "TAB_K2", 16384 + 32 * 3072)
    TBF, TBI, WFR = 16, 24, 32
    a(f"""s_lshl_b32 s23, s3, 10
    s_lshl_b32 s22, s21, 13
    s_add_u32 s22, s22, s23
    s_mov_b32 m0, s23
    s_cmp_lt_u32 s3, 8
    s_cbranch_scc0 K2_T1
    buffer_load_dwordx4 v3, s[16:19], s22 offen lds""")
    a.label("K2_T1")
    a(f"""s_and_b32 s24, s20, 31            ; slot
    s_lshl_b32 s25, s24, 16
    s_lshl_b32 s26, s3, 12
    s_add_u32 s25, s25, s26
    s_add_u32 s25, s25, {hex(ABUF_OFF)}
    s_add_u32 s26, s25, 0x8000
    s_cmp_eq_u32 s20, 32
    s_cmov_b32 s25, s26
    s_cmp_eq_u32 s24, 0
    s_cselect_b32 s26, 8, 16
    s_cmp_ge_u32 s3, s26
    s_cmov_b32 s25, {hex(OOB)}
    s_mul_i32 s26, s3, {4*AS}
    s_add_u32 s26, s26, {L_A}
    s_waitcnt lgkmcnt(0)""")
    srd(a, 12, 6, 7, WS_SIZE)
    for r in range(4):
        a(f"""s_mov_b32 m0, s26
        s_add_u32 s26, s26, {AS}
        buffer_load_dwordx4 v3, s[12:15], s25 offen lds
        s_add_u32 s25, s25, 1024""")
    a(f"""s_sub_u32 s26, s3, 8
    s_lshl_b32 s25, s26, 10
    s_add_u32 s25, s25, {hex(CA1K_OFF)}
    s_cmp_eq_u32 s3, 10
    s_cmov_b32 s25, {hex(SA64K_OFF)}
    s_mov_b32 m0, s23
    s_cmp_lt_u32 s26, 3
    s_cbranch_scc0 K2_T2
    buffer_load_dwordx4 v3, s[12:15], s25 offen lds""")
    a.label("K2_T2")
    a(f"""s_lshl_b32 s27, s21, 4
    s_add_u32 s27, s27, s3
    s_mul_i32 s27, s27, 3072
    s_add_u32 s27, s27, 16384
    s_lshl_b32 s29, s20, 16
    s_lshl_b32 s30, s21, 15
    s_add_u32 s29, s29, s30
    s_lshl_b32 s30, s3, 11
    s_add_u32 s29, s29, s30
    s_add_u32 s29, s29, {hex(WF_OFF)}""")
    a.stamp(2)
    a(f"""v_lshrrev_b32 v4, 5, v0           ; s2
    v_and_b32 v5, 31, v0              ; k2
    v_lshlrev_b32 v6, 6, v5
    v_add_u32 v6, s20, v6
    v_mul_u32_u24 v6, v6, v4
    v_and_b32 v6, 0x7ff, v6
    v_cvt_f32_u32 v6, v6
    v_mul_f32 v6, 0x3a000000, v6
    v_cos_f32 v7, v6
    v_sin_f32 v8, v6
    v_lshrrev_b32 v9, 4, v5           ; k2/16
    v_lshrrev_b32 v10, 4, v4          ; s2/16
    v_and_b32 v11, 15, v5             ; k2%16
    v_and_b32 v12, 15, v4             ; s2%16
    v_cvt_pk_bf16_f32 v13, v7, v8
    v_lshlrev_b32 v6, 11, v9
    v_lshl_add_u32 v6, v10, 10, v6
    v_lshl_add_u32 v6, v11, 4, v6
    v_lshrrev_b32 v7, 2, v12
    v_lshl_add_u32 v6, v7, 8, v6
    v_and_b32 v7, 3, v12
    v_lshl_add_u32 v6, v7, 2, v6      ; M1 addr
    ds_write_b32 v6, v13 offset:{L_M1}
    v_lshlrev_b32 v6, 11, v10
    v_lshl_add_u32 v6, v9, 10, v6
    v_lshl_add_u32 v6, v12, 4, v6
    v_lshrrev_b32 v7, 2, v11
    v_lshl_add_u32 v6, v7, 8, v6
    v_and_b32 v7, 3, v11
    v_lshl_add_u32 v6, v7, 2, v6      ; M6 addr
    ds_write_b32 v6, v13 offset:{L_M6}
    v_and_b32 v4, 15, v2              ; lam
    v_lshrrev_b32 v5, 4, v2           ; q
    v_mul_u32_u24 v6, {AS}, v4
    v_lshl_add_u32 v6, v5, 8, v6
    s_lshl_b32 s25, s3, 3
    s_add_u32 s25, s25, {L_A}
    v_add_u32 v6, s25, v6
    v_add_u32 v7, {16*AS}, v6
    v_add_u32 v8, {32*AS}, v6
    v_add_u32 v9, {48*AS}, v6
    s_lshl_b32 s25, s3, 7
    v_lshl_add_u32 v10, v5, 5, s25
    v_lshlrev_b32 v11, 13, v5
    v_lshl_add_u32 v11, v4, 2, v11
    s_add_u32 s25, s25, {L_X1}
    v_add_u32 v11, s25, v11
    v_lshlrev_b32 v12, 9, v5
    v_lshl_add_u32 v12, v4, 2, v12
    s_lshl_b32 s25, s3, 11
    s_add_u32 s25, s25, {L_X1}
    v_add_u32 v12, s25, v12
    v_mul_u32_u24 v13, {4*1088}, v5
    v_lshl_add_u32 v13, v4, 2, v13
    s_lshl_b32 s25, s3, 6
    s_add_u32 s25, s25, {L_X2}
    v_add_u32 v13, s25, v13
    v_bfe_u32 v14, v2, 2, 1
    v_mul_u32_u24 v14, 1088, v14
    v_lshrrev_b32 v15, 5, v2          ; h
    v_lshl_add_u32 v14, v15, 8, v14
    v_bfe_u32 v40, v2, 3, 2
    v_lshl_add_u32 v14, v40, 4, v14
    v_and_b32 v40, 3, v2
    v_lshl_add_u32 v14, v40, 2, v14
    s_mul_i32 s25, s3, 2176
    s_add_u32 s25, s25, {L_X2}
    v_add_u32 v14, s25, v14           ; X2 read
    """)
    a.stamp(3)
    a("s_waitcnt vmcnt(0) lgkmcnt(0)\ns_barrier")
    a.stamp(4)
    TMP, CA, TS, DAT, ACC, OP = 40, 56, 64, 76, 92, 108
    M1, M6 = 40, 56
    OQ = OP + 8
    for f in range(4):
        a(f"ds_read_b128 v[{TMP+4*f}:{TMP+4*f+3}], v3 offset:{L_TA + 1024*f}")
    for z in range(2):
        a(f"ds_read_b128 v[{CA+4*z}:{CA+4*z+3}], v10 offset:{L_CA + 16*z}")
    dadr = {(0, 0): 6, (1, 0): 7, (0, 1): 8, (1, 1): 9}
    for c in range(2):
        for t in range(2):
            d = DAT + 4 * (2 * c + t)
            a(f"ds_read2_b64 v[{d}:{d+3}], v{dadr[(t,c)]} offset0:0 offset1:16")
    for t in range(2):
        a(f"buffer_load_dwordx4 v[{WFR+4*t}:{WFR+4*t+3}], v3, s[12:15], s29 offen offset:{1024*t}")
    for f in range(3):
        a(f"buffer_load_dwordx4 v[{TBF+4*f}:{TBF+4*f+3}], v3, s[16:19], s27 offen offset:{1024*f}")
    a("s_mov_b32 s43, 0x80008000\ns_waitcnt lgkmcnt(4)")
    for cs in range(2):
        for e in range(8): a(f"v_mul_f32 v{TMP+8*cs+e}, v{TMP+8*cs+e}, v{CA+e}")
        for e in range(0, 8, 2): a(f"v_cvt_pk_bf16_f32 v{TS+4*cs+e//2}, v{TMP+8*cs+e}, v{TMP+8*cs+e+1}")
    for z in range(4): a(f"v_xor_b32 v{TS+8+z}, s43, v{TS+4+z}")
    a.stamp(5)
    D = lambda t, cp: f"v[{ACC+8*t+4*cp}:{ACC+8*t+4*cp+3}]"
    a("s_waitcnt lgkmcnt(0)")
    for f in range(4):
        a(f"ds_read_b128 v[{M1+4*f}:{M1+4*f+3}], v3 offset:{L_M1 + 1024*f}")
    Bsel = {(0, 0): TS, (1, 0): TS + 4, (0, 1): TS + 8, (1, 1): TS}
    for c in range(2):
        for t in range(2):
            for cp in range(2):
                d = DAT + 4 * (2 * c + t); b = Bsel[(c, cp)]
                a(f"v_mfma_f32_16x16x32_bf16 {D(t,cp)}, v[{d}:{d+3}], v[{b}:{b+3}], {'0' if c == 0 else D(t,cp)}")
    a("""s_cmp_eq_u32 s20, 0
    s_cbranch_scc0 K2_NOSA
    s_lshl_b32 s25, s3, 6
    v_lshl_add_u32 v10, v5, 4, s25""")
    a(f"""ds_read_b128 v[{OP}:{OP+3}], v10 offset:{L_SA}
    ds_read_b128 v[{OP+8}:{OP+11}], v3 offset:{L_TAB}
    ds_read_b128 v[{OP+12}:{OP+15}], v3 offset:{L_TAB+1024}
    s_waitcnt lgkmcnt(0)""")
    for t in range(2):
        for cp in range(2):
            a(f"v_mfma_f32_16x16x32_bf16 {D(t,cp)}, v[{OP}:{OP+3}], v[{OP+8+4*cp}:{OP+11+4*cp}], {D(t,cp)}")
    a.label("K2_NOSA")
    a("s_nop 4")
    def pack2():
        for t in range(2):
            for r in range(4):
                a(f"v_cvt_pk_bf16_f32 v{OP+4*t+r}, v{ACC+8*t+r}, v{ACC+8*t+4+r}")
                a(f"v_cvt_pk_bf16_f32 v{OQ+4*t+r}, v{ACC+8*t+4+r}, -v{ACC+8*t+r}")
    pack2()
    a("s_waitcnt lgkmcnt(0)")
    for t in range(2):
        for tp in range(2):
            for cp in range(2):
                m = M1 + 4 * (2 * tp + t); d = D(tp, cp); o = (OP, OQ)[cp] + 4 * t
                a(f"v_mfma_f32_16x16x32_bf16 {d}, v[{o}:{o+3}], v[{m}:{m+3}], {'0' if t == 0 else d}")
    for f in range(4):
        a(f"ds_read_b128 v[{M6+4*f}:{M6+4*f+3}], v3 offset:{L_M6 + 1024*f}")
    P2 = DAT
    for t in range(2):
        for r in range(4):
            a(f"v_cvt_pk_bf16_f32 v{P2+4*t+r}, v{ACC+8*t+r}, v{ACC+8*t+4+r}")
            a(f"ds_write_b32 v11, v{P2+4*t+r} offset:{2048*r + 64*t}")
    WU = M1
    a("s_waitcnt vmcnt(3)")
    for k in range(8):
        a(f"v_lshlrev_b32 v{WU+2*k}, 16, v{WFR+k}\nv_and_b32 v{WU+2*k+1}, 0xffff0000, v{WFR+k}")
    a.stamp(6)
    a("s_waitcnt lgkmcnt(0)\ns_barrier")
    a.stamp(7)
    for t in range(2):
        a(f"ds_read2_b32 v[{OP+4*t}:{OP+4*t+1}], v12 offset0:{16*t} offset1:{16*t+32}")
        a(f"ds_read2_b32 v[{OP+4*t+2}:{OP+4*t+3}], v12 offset0:{16*t+64} offset1:{16*t+96}")
    TAI = WFR
    for v in range(2):
        a(f"ds_read_b128 v[{TAI+4*v}:{TAI+4*v+3}], v3 offset:{L_TAI + 1024*v}")
    a("s_waitcnt vmcnt(0)")
    for t in range(2):
        a(f"s_waitcnt lgkmcnt({4 - 2*t})")
        for mt in range(2):
            a(f"v_mfma_f32_16x16x32_bf16 {D(t,mt)}, v[{TBF+4*mt}:{TBF+4*mt+3}], v[{OP+4*t}:{OP+4*t+3}], 0")
    T1 = 72
    for t in range(2):
        for x in range(4):
            re = ACC + 8 * t + 2 * x; im = re + 1
            wr = WU + 8 * t + 2 * x; wi = wr + 1
            tt = T1 + 2 * (x % 2)
            a(f"""v_mul_f32 v{tt}, v{re}, v{wr}
            v_mul_f32 v{tt+1}, v{re}, v{wi}
            v_fma_f32 v{tt}, -v{im}, v{wi}, v{tt}
            v_fma_f32 v{tt+1}, v{im}, v{wr}, v{tt+1}
            v_cvt_pk_bf16_f32 v{P2+4*t+x}, v{tt}, v{tt+1}
            v_cvt_pk_bf16_f32 v{P2+8+4*t+x}, -v{tt+1}, v{tt}""")
        for cp in range(2):
            o = P2 + 8 * cp + 4 * t
            a(f"v_mfma_f32_16x16x32_bf16 {D(t,cp)}, v[{o}:{o+3}], v[{TBI}:{TBI+3}], 0")
    a(f"""v_lshlrev_b32 v6, 5, v4           ; d2*32
    v_lshl_add_u32 v6, v15, 16, v6    ; + h'*65536
    v_bfe_u32 v7, v2, 4, 1            ; c'
    s_movk_i32 s30, 512
    s_cmp_eq_u32 s24, 0
    s_cmov_b32 s30, {hex(OOB)}
    v_mul_lo_u32 v7, v7, s30
    v_add_u32 v6, v6, v7
    s_lshl_b32 s30, s24, 10
    s_cmp_eq_u32 s20, 32
    s_cmov_b32 s30, 512
    s_lshl_b32 s31, s21, 15
    s_add_u32 s30, s30, s31
    s_lshl_b32 s31, s3, 17
    s_add_u32 s30, s30, s31
    s_add_u32 s30, s30, {hex(VBUF_OFF)}""")
    pack2()
    for t in range(2):
        for tp in range(2):
            for cp in range(2):
                m = M6 + 4 * (2 * tp + t); d = D(tp, cp); o = (OP, OQ)[cp] + 4 * t
                a(f"v_mfma_f32_16x16x32_bf16 {d}, v[{m}:{m+3}], v[{o}:{o+3}], {'0' if t == 0 else d}")
    for t in range(2):
        for r in range(4):
            a(f"v_cvt_pk_bf16_f32 v{P2+4*t+r}, v{ACC+8*t+r}, v{ACC+8*t+4+r}")
            a(f"ds_write_b32 v13, v{P2+4*t+r} offset:{(16*t + r)*1088}")
    a("s_waitcnt lgkmcnt(0)\ns_barrier")
    a.stamp(8)
    for v in range(2):
        a(f"ds_read2_b32 v[{OP+4*v}:{OP+4*v+1}], v14 offset0:{128*v} offset1:{128*v+16}")
        a(f"ds_read2_b32 v[{OP+4*v+2}:{OP+4*v+3}], v14 offset0:{128*v+32} offset1:{128*v+48}")
    big = f"v[{ACC}:{ACC+15}]"
    for v in range(2):
        a(f"s_waitcnt lgkmcnt({2 - 2*v})")
        a(f"v_mfma_f32_32x32x16_bf16 {big}, v[{OP+4*v}:{OP+4*v+3}], v[{TAI+4*v}:{TAI+4*v+3}], {'0' if v == 0 else big}")
    for hf in range(2):
        pb = P2 + 4 * hf
        for z in range(4):
            a(f"v_cvt_pk_bf16_f32 v{pb+z}, v{ACC+8*hf+2*z}, v{ACC+8*hf+2*z+1}")
        a(f"buffer_store_dwordx4 v[{pb}:{pb+3}], v6, s[12:15], s30 offen offset:{16*hf}")
    a.stamp(9)
    if Asm.STAMP: a("s_waitcnt vmcnt(0)")
    a.stamp_end(1, 16)
    a("s_endpgm")
    side(a)

def side(a):
    a.label("K2_SIDE")
    a(f"""s_sub_u32 s20, s2, {K2_MAIN}
    s_cmp_ge_u32 s20, {K2_WGU + K2_WD}
    s_cbranch_scc1 K2_GEMV
    v_lshrrev_b32 v13, 4, v2          ; q
    v_and_b32 v4, 15, v2              ; lam
    s_lshl_b32 s31, s3, 11
    s_add_u32 s31, s31, 0x8000
    v_add_u32 v14, s31, v3
    s_cmp_ge_u32 s20, {K2_WGU}
    s_cbranch_scc1 K2_WD
    s_and_b32 s22, s20, 1             ; gu
    s_lshr_b32 s23, s20, 1            ; G (32 f)
    s_lshl_b32 s24, s22, 3
    s_add_u32 s24, s24, 32
    s_load_dwordx2 s[4:5], s[0:1], s24
    s_mul_i32 s25, s3, {32*2752}
    s_lshl_b32 s26, s23, 6
    s_add_u32 s25, s25, s26
    v_mul_u32_u24 v7, {8*2752}, v13
    v_lshl_add_u32 v7, v4, 2, v7
    v_lshrrev_b32 v6, 3, v4
    v_and_b32 v5, 7, v4
    v_lshlrev_b32 v8, 10, v6
    v_lshl_add_u32 v8, v13, 8, v8
    v_lshl_add_u32 v8, v5, 5, v8
    v_add_u32 v8, s31, v8
    s_lshl_b32 s26, s23, 16
    s_lshl_b32 s27, s22, 14
    s_add_u32 s26, s26, s27
    s_lshl_b32 s27, s3, 10
    s_add_u32 s26, s26, s27
    s_add_u32 s26, s26, {hex(WGU_OFF)}
    v_lshlrev_b32 v9, 5, v13
    s_lshl_b32 s28, s3, 7
    s_add_u32 s28, s28, {3*2048}
    s_waitcnt lgkmcnt(0)""")
    srd(a, 8, 4, 5, 512 * 2752)
    srd(a, 12, 6, 7, WS_SIZE)
    W0, M0_, O0, U0, AC = 16, 32, 48, 64, 72
    for e in range(8):
        a(f"buffer_load_dword v{W0+e}, v7, s[8:11], s25 offen\ns_add_u32 s25, s25, 2752")
    for z in range(4):
        a(f"buffer_load_dwordx4 v[{M0_+4*z}:{M0_+4*z+3}], v9, s[12:15], s28 offen offset:{2048*(z//2) + 16*(z%2)}")
    for z in range(4): a(f"v_mov_b32 v{AC+z}, 0")
    a("v_mov_b32 v10, 0x3f803f80\ns_waitcnt vmcnt(0)")
    a.stamp(3)
    for ep in range(4):
        for tau in range(2):
            t = U0 + 2 * (2 * (ep % 2) + tau)
            for z in range(2):
                e = 2 * ep + z
                if tau: a(f"v_and_b32 v{t+z}, 0xffff0000, v{W0+e}")
                else: a(f"v_lshlrev_b32 v{t+z}, 16, v{W0+e}")
                a(f"v_fmac_f32 v{AC+2+tau}, v{t+z}, v{M0_+e}")
                a(f"v_mul_f32 v{t+z}, v{t+z}, v{M0_+8+e}")
            o = O0 + 4 * tau + ep
            a(f"v_cvt_pk_bf16_f32 v{o}, v{t}, v{t+1}")
            a(f"v_dot2c_f32_bf16 v{AC+tau}, v{o}, v10")
    for tau in range(2):
        a(f"ds_write_b128 v8, v[{O0+4*tau}:{O0+4*tau+3}] offset:{16*tau}")
    a(f"""v_lshl_add_u32 v11, v1, 2, v13
    v_lshlrev_b32 v11, 8, v11
    v_lshl_add_u32 v11, v4, 3, v11
    ds_write2_b64 v11, v[{AC}:{AC+1}], v[{AC+2}:{AC+3}] offset0:0 offset1:16""")
    for i in range(2):
        a(f"ds_read_b128 v[{W0+4*i}:{W0+4*i+3}], v14 offset:{1024*i}")
    a(f"""s_lshl_b32 s24, s3, 10
    v_lshl_add_u32 v15, v2, 2, s24""")
    for i in range(2):
        a(f"s_waitcnt lgkmcnt({1-i})\nbuffer_store_dwordx4 v[{W0+4*i}:{W0+4*i+3}], v3, s[12:15], s26 offen\ns_add_u32 s26, s26, 0x8000")
    a(f"""ds_read2st64_b32 v[32:33], v15 offset0:0 offset1:1
    ds_read2st64_b32 v[34:35], v15 offset0:2 offset1:3
    v_lshlrev_b32 v12, 2, v0
    s_waitcnt lgkmcnt(0)
    v_add_f32 v32, v32, v33
    v_add_f32 v34, v34, v35
    v_add_f32 v32, v32, v34
    ds_write_b32 v12, v32 offset:16384
    s_waitcnt lgkmcnt(0)
    s_barrier
    s_cmp_ge_u32 s3, 1
    s_cbranch_scc1 K2_END""")
    for z in range(8):
        a(f"ds_read2st64_b32 v[{32+2*z}:{33+2*z}], v12 offset0:{64+2*z} offset1:{65+2*z}")
    a(f"""v_and_b32 v15, 1, v13
    v_lshlrev_b32 v15, 8, v15
    v_lshrrev_b32 v11, 1, v13
    v_lshl_add_u32 v15, v11, 6, v15
    v_lshl_add_u32 v15, v4, 2, v15
    s_lshl_b32 s24, s23, 9
    s_lshl_b32 s25, s22, 7
    s_add_u32 s24, s24, s25
    s_add_u32 s24, s24, {hex(CSB_OFF)}
    s_waitcnt lgkmcnt(0)""")
    for st in (8, 4, 2, 1):
        for z in range(st): a(f"v_add_f32 v{32+z}, v{32+z}, v{32+st+z}")
    a("buffer_store_dword v32, v15, s[12:15], s24 offen")
    if Asm.STAMP: a("s_waitcnt vmcnt(0)")
    a.stamp_end(1, 16)
    a("s_endpgm")
    a.label("K2_WD")
    a(f"""s_load_dwordx2 s[4:5], s[0:1], 48
    s_sub_u32 s21, s20, {K2_WGU}      ; ks
    s_lshr_b32 s22, s3, 1             ; nt
    s_and_b32 s23, s3, 1              ; half : i/8
    s_lshl_b32 s25, s21, 15
    s_lshl_b32 s26, s3, 6
    s_add_u32 s25, s25, s26
    s_add_u32 s24, s25, 8192
    v_lshrrev_b32 v7, 1, v13
    v_lshlrev_b32 v7, 14, v7
    v_and_b32 v9, 1, v13
    v_lshl_add_u32 v7, v9, 12, v7
    v_lshl_add_u32 v7, v4, 2, v7
    v_bfe_u32 v5, v4, 1, 2            ; t = (lam/2)%4
    v_lshrrev_b32 v6, 3, v4           ; (i/4)%2
    v_and_b32 v9, 1, v4
    v_lshlrev_b32 v8, 9, v5
    v_lshl_add_u32 v8, v13, 7, v8
    v_lshl_add_u32 v8, v6, 6, v8
    v_lshl_add_u32 v8, v9, 5, v8
    v_add_u32 v8, s31, v8
    v_lshrrev_b32 v10, 3, v2          ; (t%2)*4+q
    v_lshlrev_b32 v10, 8, v10
    v_and_b32 v11, 7, v2
    v_lshl_add_u32 v10, v11, 4, v10
    s_mul_i32 s26, s22, {43*4096}
    s_lshl_b32 s27, s21, 12
    s_add_u32 s26, s26, s27
    s_lshl_b32 s27, s23, 7
    s_add_u32 s26, s26, s27
    s_add_u32 s26, s26, {hex(WD_OFF)}
    s_waitcnt lgkmcnt(0)""")
    srd(a, 8, 4, 5, 1376 * 1024)
    srd(a, 12, 6, 7, WS_SIZE)
    for e in range(8):
        a(f"buffer_load_dword v{16+e}, v7, s[8:11], s{25 if e < 4 else 24} offen offset:{1024*(e%4)}")
    a("""s_mov_b32 s41, 0x05040100
    s_mov_b32 s42, 0x07060302
    s_waitcnt vmcnt(0)""")
    a.stamp(3)
    for tau in range(2):
        for ep in range(4):
            a(f"v_perm_b32 v{32+4*tau+ep}, v{16+2*ep+1}, v{16+2*ep}, s{41+tau}")
        a(f"ds_write_b128 v8, v[{32+4*tau}:{35+4*tau}] offset:{16*tau}")
    for i in range(2):
        a(f"ds_read_b128 v[{48+4*i}:{51+4*i}], v14 offset:{1024*i}")
    for i in range(2):
        a(f"s_waitcnt lgkmcnt({1-i})\nbuffer_store_dwordx4 v[{48+4*i}:{51+4*i}], v10, s[12:15], s26 offen offset:{2048*i}")
    if Asm.STAMP: a("s_waitcnt vmcnt(0)")
    a.stamp_end(1, 16)
    a("s_endpgm")
    a.label("K2_GEMV")
    a(f"""s_sub_u32 s20, s20, {K2_WGU + K2_WD}
    s_cmp_ge_u32 s20, 16
    s_cselect_b32 s21, 64, 32
    s_add_u32 s20, s20, s21""")
    gemv(a, 16, "K2", 1)
    a.label("K2_END")
    a("s_endpgm")
```

```python
from common import *
from asmlib import *
from gen_k1 import srd, tab_srd

K3_BLOCK = 512
XS = 1040
L_X = 65536
L_G1 = L_X + 64 * XS
L_GA = L_G1 + 8192
L_ST = L_GA + 2048
L_RM = L_ST + 4096
L_CSB = L_RM + 4096
K3_LDS = L_CSB + 3072
K3_VGPR = 256
K3_ACC = 256
HM_M = 86 * 2048
XPRE = 4
NEARLY = 4

class Cnt:
    def __init__(self, name, mx): self.ops = []; self.name = name; self.mx = mx
    def issue(self, tag): self.ops.append(tag)
    def wait(self, a, tag):
        last = max(i for i, t in enumerate(self.ops) if t == tag)
        n = len(self.ops) - 1 - last
        a(f"s_waitcnt {self.name}({min(n, self.mx)})")
    def copy(self):
        v = Cnt(self.name, self.mx); v.ops = list(self.ops); return v

def STATS(T):
    return f"""v_pk_add_f32 v[{T}:{T+1}], v[{T}:{T+1}], v[{T+2}:{T+3}]
                v_pk_add_f32 v[{T+4}:{T+5}], v[{T+4}:{T+5}], v[{T+6}:{T+7}]
                v_pk_add_f32 v[{T+8}:{T+9}], v[{T+8}:{T+9}], v[{T+10}:{T+11}]
                v_pk_add_f32 v[{T+12}:{T+13}], v[{T+12}:{T+13}], v[{T+14}:{T+15}]
                v_pk_add_f32 v[{T}:{T+1}], v[{T}:{T+1}], v[{T+4}:{T+5}]
                v_pk_add_f32 v[{T+8}:{T+9}], v[{T+8}:{T+9}], v[{T+12}:{T+13}]
                v_pk_add_f32 v[{T}:{T+1}], v[{T}:{T+1}], v[{T+8}:{T+9}]
                v_mul_f32 v12, 0x3b000000, v{T}
                v_mul_f32 v13, 0x3b000000, v{T+1}
                v_fma_f32 v13, -v12, v12, v13
                v_max_f32 v13, 0, v13
                v_cvt_pk_bf16_f32 v14, v12, v13
                v_lshlrev_b32 v12, 16, v14
                v_and_b32 v13, 0xffff0000, v14
                v_add_f32 v13, 0x3727c5ac, v13
                v_cvt_pk_bf16_f32 v13, v13, v13
                v_lshlrev_b32 v13, 16, v13
                v_sqrt_f32 v13, v13
                v_cvt_pk_bf16_f32 v13, v13, v13
                v_lshlrev_b32 v13, 16, v13
                v_rcp_f32 v13, v13
                v_mul_f32 v12, v12, v13
                v_sub_f32 v12, 0, v12""".split("\n")

WD1 = 9

def k34(a):
    a.label("k34_kernel")
    a.stamp(0, True); a.stamp(1)
    ACC, FR, E = 16, 80, 128
    a(f"""s_cmp_ge_u32 s2, 256
    s_cbranch_scc1 K3_END
    s_load_dwordx2 s[4:5], s[0:1], 0
    s_load_dwordx2 s[6:7], s[0:1], 88
    s_load_dwordx2 s[56:57], s[0:1], 72
    v_lshrrev_b32 v1, 6, v0
    v_and_b32 v2, 63, v0              ; lane
    v_lshlrev_b32 v3, 4, v2           ; lane*16
    v_readfirstlane_b32 s3, v1        ; wave
    s_and_b32 s20, s2, 3
    s_bfe_u32 s21, s2, 0x30003
    s_lshl_b32 s21, s21, 2
    s_add_u32 s20, s20, s21           ; s20 = m
    s_and_b32 s21, s2, 4
    s_lshr_b32 s22, s2, 6
    s_add_u32 s21, s21, s22           ; s21 = f
    v_bfe_u32 v4, v2, 2, 2
    v_lshlrev_b32 v4, 9, v4
    v_lshrrev_b32 v5, 4, v2
    v_lshl_add_u32 v4, v5, 6, v4
    v_and_b32 v5, 3, v2
    v_lshl_add_u32 v4, v5, 4, v4
    s_lshl_b32 s22, s20, 16
    s_lshl_b32 s23, s3, 13
    s_add_u32 s22, s22, s23
    s_add_u32 s22, s22, {hex(VBUF_OFF)}
    s_sub_u32 s24, s22, 768
    s_add_u32 s25, s22, 4096
    s_add_u32 s26, s24, 4096
    s_mov_b32 m0, s23""")
    tab_srd(a, 16, "TAB_G1", 8192)
    a("s_waitcnt lgkmcnt(0)")
    srd(a, 12, 6, 7, WS_SIZE)
    vm = Cnt("vmcnt", 63)
    for grp in range(2):
        if grp == 1: a("s_add_u32 s23, s23, 4096\ns_mov_b32 m0, s23")
        for i in range(4):
            so = (22 if i % 2 == 0 else 24) if grp == 0 else (25 if i % 2 == 0 else 26)
            a(f"buffer_load_dwordx4 v4, s[12:15], s{so} offen offset:{1024*i} lds"); vm.issue("v")
    srd(a, 8, 4, 5, 2048 * 1024)
    a(f"""s_mul_i32 s28, s21, 11
    s_cmp_eq_u32 s21, 7
    s_subb_u32 s28, s28, 0            ; ft0
    s_lshl_b32 s23, s3, 10
    s_add_u32 s24, s23, {L_G1}
    s_mov_b32 m0, s24
    s_add_u32 s25, s23, 4096
    buffer_load_dwordx4 v3, s[16:19], s23 offen lds
    s_add_u32 s24, s23, {L_GA}
    s_lshl_b32 s26, s28, 8
    s_add_u32 s26, s26, s23
    s_add_u32 s26, s26, {hex(CSB_OFF - 2048)}
    s_add_u32 s27, s23, {L_CSB - 2048}
    s_cmp_ge_u32 s3, 2
    s_cmov_b32 s25, s26
    s_cmov_b32 s24, s27
    s_cmp_lt_u32 s3, 5
    s_cbranch_scc0 K3_NOMOD
    s_mov_b32 m0, s24
    s_nop 0
    buffer_load_dwordx4 v3, s[12:15], s25 offen lds""")
    vm.issue("v")
    a.label("K3_NOMOD")
    a(f"""s_lshl_b32 s23, s3, 18
    s_lshl_b32 s24, s20, 10
    s_add_u32 s23, s23, s24
    s_mul_i32 s24, s3, {8*XS}
    s_add_u32 s24, s24, {L_X}""")
    def xrow():
        a(f"""s_mov_b32 m0, s24
        s_add_u32 s24, s24, {XS}
        buffer_load_dwordx4 v3, s[8:11], s23 offen lds
        s_add_u32 s23, s23, 0x8000""")
        vm.issue("x")
    for r in range(XPRE): xrow()
    a(f"""s_add_u32 s28, s28, s3            ; ftA
    s_lshl_b32 s30, s28, 15
    s_add_u32 s30, s30, {hex(WGU_OFF)}
    s_cmp_ge_u32 s21, 6
    s_cselect_b32 s31, 2, 3
    s_mov_b32 s29, 8192
    s_cmp_lt_u32 s3, s31
    s_cselect_b32 s31, 1, 0
    s_cmov_b32 s29, 0x40000
    s_add_u32 s29, s29, s30""")
    for b in range(2):
        for gu in range(2):
            for kb in range(4):
                a(f"s_add_u32 s{32+8*b+4*gu+kb}, s{30 if b == 0 else 29}, {gu*16384 + kb*4096}")
    def wload1(aa, b, gu, reg, vmx):
        d = reg + 8 * b + 4 * gu
        a(f"buffer_load_dwordx4 v[{d}:{d+3}], v3, s[12:15], s{32+8*b+4*gu+aa//4} offen offset:{1024*(aa%4)}")
        vmx.issue(("w", aa))
    early = [(aa, b, gu) for aa in range(NEARLY) for b in range(2) for gu in range(2)]
    def sprinkle(n=1):
        for _ in range(n):
            if early:
                aa, b, gu = early.pop(0); wload1(aa, b, gu, E + 16 * aa, vm)
    a(f"""v_and_b32 v8, 3, v2               ; c
    v_bfe_u32 v9, v2, 2, 2            ; rr
    v_bfe_u32 v10, v2, 4, 1           ; G%2 = ic/4
    v_lshrrev_b32 v12, 5, v2          ; h'
    v_and_b32 v11, 1, v8              ; ic%2
    v_lshl_add_u32 v10, v11, 1, v10
    v_lshlrev_b32 v10, 4, v10         ; 32*(ic%2) + 16*(ic/4)
    v_lshl_add_u32 v10, v1, 8, v10
    v_lshl_add_u32 v10, v9, 6, v10
    v_lshrrev_b32 v8, 1, v8           ; (ic/2)%2
    v_lshl_add_u32 v10, v8, 3, v10
    v_lshl_add_u32 v4, v12, 12, v10
    v_add_u32 v5, {L_G1}, v3          ; v5 = G1 addr
    v_lshlrev_b32 v6, 6, v12
    v_lshl_add_u32 v6, v1, 7, v6
    v_add_u32 v6, {L_GA}, v6
    v_and_b32 v7, 31, v2
    v_mul_u32_u24 v7, {XS}, v7
    v_lshl_add_u32 v7, v12, 5, v7
    v_lshl_add_u32 v7, v1, 6, v7
    v_add_u32 v7, {L_X}, v7
    v_lshlrev_b32 v8, 3, v2
    v_lshl_add_u32 v8, v1, 9, v8
    v_add_u32 v8, {L_ST}, v8
    v_mov_b32 v9, 0x3f803f80
    v_mov_b32 v10, 0
    v_mov_b32 v11, 0
    v_mov_b32 v12, 0
    v_mov_b32 v13, 0""")
    a.stamp(2)
    vm.wait(a, "v")
    a("s_barrier")
    a.stamp(3)
    acc = lambda p, st: f"v[{ACC+32*st+16*p}:{ACC+32*st+16*p+15}]"
    def rd(ks):
        b = FR + 16 * (ks % 3)
        for p in range(2):
            for hf in range(2):
                a(f"ds_read_b64_tr_b16 v[{b+4*p+2*hf}:{b+4*p+2*hf+1}], v4 offset:{32768*p + 8192*ks + 2048*hf}")
        for st in range(2):
            a(f"ds_read_b128 v[{b+8+4*st}:{b+8+4*st+3}], v5 offset:{1024*(4*st+ks)}")
    rd(0); rd(1)
    for r in range(8 - XPRE): xrow()
    for ks in range(4):
        if ks == 0: rd(2)
        a(f"s_waitcnt lgkmcnt({(12, 12, 6, 0)[ks]})")
        b = FR + 16 * (ks % 3)
        for st in range(2):
            for p in range(2):
                a(f"v_mfma_f32_32x32x16_bf16 {acc(p, st)}, v[{b+4*p}:{b+4*p+3}], v[{b+8+4*st}:{b+8+4*st+3}], {'0' if ks == 0 else acc(p, st)}")
            if st: sprinkle(1)
        if ks == 0: rd(3)
    GA = FR + 16
    for pm in range(2):
        for z in range(4):
            a(f"ds_read_b128 v[{GA+16*pm+4*z}:{GA+16*pm+4*z+3}], v6 offset:{1024*pm + 16*z}")
    vm.wait(a, "x")
    a("s_barrier")
    a.stamp(4)
    XB = FR
    xoff = lambda st, pm, z: 32 * XS * st + 512 * pm + 16 * z
    def rdx(n):
        st, z = n // 2, n % 2
        for pm in range(2):
            b = XB + 8 * (n % 2) + 4 * pm
            a(f"ds_read_b128 v[{b}:{b+3}], v7 offset:{xoff(st, pm, z)}")
    rdx(0); rdx(1)
    S = {0: (10, 11), 1: (12, 13)}
    for n in range(4):
        st, z = n // 2, n % 2
        a(f"s_waitcnt lgkmcnt({(2, 4, 4, 2)[n]})")
        for k4 in range(4):
            k = 4 * z + k4
            a0 = ACC + 32 * st + 2 * k; a1 = a0 + 16
            xp = XB + 8 * (n % 2) + k4; xm = xp + 4
            t = 14 if k4 % 2 == 0 else 0
            a(f"""v_pk_add_f32 v[{t}:{t+1}], v[{a0}:{a0+1}], v[{a1}:{a1+1}]
            v_pk_add_f32 v[{a1}:{a1+1}], v[{a0}:{a0+1}], v[{a1}:{a1+1}] neg_lo:[0,1] neg_hi:[0,1]
            v_lshlrev_b32 v{a0}, 16, v{xp}
            v_and_b32 v{a0+1}, 0xffff0000, v{xp}
            v_pk_fma_f32 v[{a0}:{a0+1}], v[{t}:{t+1}], v[{GA+2*k}:{GA+2*k+1}], v[{a0}:{a0+1}]
            v_lshlrev_b32 v{t}, 16, v{xm}
            v_and_b32 v{t+1}, 0xffff0000, v{xm}
            v_pk_fma_f32 v[{a1}:{a1+1}], v[{a1}:{a1+1}], v[{GA+16+2*k}:{GA+16+2*k+1}], v[{t}:{t+1}]
            v_cvt_pk_bf16_f32 v{xp}, v{a0}, v{a0+1}
            v_cvt_pk_bf16_f32 v{xm}, v{a1}, v{a1+1}
            v_dot2c_f32_bf16 v{S[st][0]}, v{xp}, v9
            v_dot2c_f32_bf16 v{S[st][1]}, v{xp}, v{xp}
            v_dot2c_f32_bf16 v{S[st][0]}, v{xm}, v9
            v_dot2c_f32_bf16 v{S[st][1]}, v{xm}, v{xm}""")
            sprinkle(1)
        for pm in range(2):
            b = XB + 8 * (n % 2) + 4 * pm
            a(f"ds_write_b128 v7, v[{b}:{b+3}] offset:{xoff(st, pm, z)}")
        if n + 2 < 4: rdx(n + 2)
    sprinkle(32)
    a(f"""v_permlane32_swap_b32 v10, v12
    v_permlane32_swap_b32 v11, v13
    v_add_f32 v10, v10, v12
    v_add_f32 v11, v11, v13
    ds_write_b64 v8, v[10:11]
    v_and_b32 v4, 15, v2
    v_mul_u32_u24 v4, {XS}, v4
    v_lshrrev_b32 v5, 4, v2           ; q
    v_lshl_add_u32 v4, v5, 4, v4
    v_add_u32 v4, {L_X}, v4
    v_lshlrev_b32 v6, 3, v2
    v_add_u32 v7, {L_ST}, v6
    s_lshl_b32 s22, s3, 9
    s_add_u32 s22, s22, {L_RM}
    v_add_u32 v6, s22, v6
    v_and_b32 v8, 15, v2
    v_lshlrev_b32 v8, 3, v8
    v_add_u32 v8, s22, v8
    s_lshl_b32 s22, s3, 8
    s_add_u32 s22, s22, {L_CSB}
    v_lshl_add_u32 v9, v5, 4, s22
    s_mul_i32 s22, s20, {HM_M}
    s_add_u32 s22, s22, {hex(HM_OFF)}
    s_lshl_b32 s23, s28, 11
    s_add_u32 s48, s22, s23
    s_add_u32 s49, s48, 0x4000        ; tile B
    s_and_b32 s50, s3, 3              ; kq
    s_lshr_b32 s51, s3, 2             ; mh
    s_mul_i32 s23, s50, {11*4096}
    s_add_u32 s52, s22, s23
    s_mul_i32 s53, s21, {43*4096}
    s_add_u32 s53, s53, s23
    s_add_u32 s53, s53, {hex(WD_OFF)}
    s_and_b32 s23, s50, 1
    s_lshl_b32 s23, s23, 11
    v_add_u32 v10, s23, v3
    s_xor_b32 s23, s23, 2048
    v_add_u32 v11, s23, v3
    s_cmp_eq_u32 s31, 1
    s_waitcnt lgkmcnt(0)
    s_barrier
    s_cbranch_scc0 K3_M1""")
    BF = FR
    XSLOT = FR + 32
    phi = [7, 0, 1, 2, 3, 4, 5, 6]
    wdslot = lambda j: E + 16 * phi[j % 8]
    def wdload1(j, tl, vmx, tag):
        if tl == 0:
            a(f"s_add_u32 s54, s53, {4096*j}")
            if j == 10: a(f"s_cmp_eq_u32 s50, 3\ns_cmov_b32 s54, {hex(OOB)}")
        d = wdslot(j) + 4 * tl
        a(f"buffer_load_dwordx4 v[{d}:{d+3}], v{10 + tl//2}, s[12:15], s54 offen offset:{1024*(tl%2)}")
        vmx.issue(tag)
    def wdload(j, vmx, tag):
        for tl in range(4): wdload1(j, tl, vmx, tag)
    for nt in (2, 1):
        if nt == 1: a.label("K3_M1")
        a.stamp(5)
        vx = vm.copy(); lg = Cnt("lgkmcnt", 15)
        if nt == 2:
            order = list(range(16))
            wreg = lambda ks: (E + 16 * (ks % 9)) if ks % 9 < 8 else XSLOT
            wtag = lambda ks: ("w", ks)
        else:
            order = [x for aa in range(8) for x in (aa, aa + 8)]
            wreg = lambda ks: E + 16 * (ks % 8) + 8 * (ks // 8)
            wtag = lambda ks: ("w", ks % 8)
        def rdb(i):
            ks = order[i]; b = BF + 16 * (i % 2)
            for mt in range(4):
                a(f"ds_read_b128 v[{b+4*mt}:{b+4*mt+3}], v4 offset:{16*XS*mt + 64*ks}"); lg.issue(("b", i))
        def wl(ks):
            for b in range(2):
                for gu in range(2): wload1(ks, b, gu, wreg(ks), vx)
        pend = []
        def q_w(aa, reg, ready):
            for b in range(2):
                for gu in range(2):
                    pend.append((ready, (lambda aa=aa, b=b, gu=gu, reg=reg: wload1(aa, b, gu, reg, vx))))
        def q_wd(j, ready):
            for tl in range(4):
                pend.append((ready, (lambda j=j, tl=tl: wdload1(j, tl, vx, "wd"))))
        for aa in range(NEARLY, 8): q_w(aa, E + 16 * aa, -1)
        if nt == 2:
            q_w(8, XSLOT, -1)
            for ks in range(9, 16): q_w(ks, wreg(ks), ks - 9)
            q_wd(0, 7)
            for j in range(1, 8): q_wd(j, j + 8)
        else:
            for sl in range(8): q_wd((sl + 1) % 8, max(2 * sl + 1, WD1))
        def pump(done_iter, n):
            while n > 0 and pend and pend[0][0] <= done_iter:
                pend.pop(0)[1](); n -= 1
        rdb(0)
        pump(-1, 4)
        for i in range(16):
            ks = order[i]
            if i < 15: rdb(i + 1)
            if i == 10:
                for w in range(8):
                    a(f"ds_read_b64 v[{XSLOT+2*w}:{XSLOT+2*w+1}], v7 offset:{512*w}"); lg.issue("st")
            vx.wait(a, wtag(ks)); lg.wait(a, ("b", i))
            b = BF + 16 * (i % 2); wr = wreg(ks)
            extra = []
            if i == 12:
                T = XSLOT
                extra = STATS(T)
            for mt in range(4):
                for t in range(nt):
                    for gu in range(2):
                        d = ACC + 32 * t + 16 * gu + 4 * mt
                        w_ = wr + 8 * t + 4 * gu
                        a(f"v_mfma_f32_16x16x32_bf16 v[{d}:{d+3}], v[{w_}:{w_+3}], v[{b+4*mt}:{b+4*mt+3}], {'0' if i == 0 else f'v[{d}:{d+3}]'}")
                        for _ in range(2 if nt == 2 else 3):
                            if extra: a(extra.pop(0))
                pump(i - 1 if mt < 3 else i, 2 if nt == 2 else 1)
            assert not extra
            if i == 12:
                a("ds_write_b64 v6, v[12:13]"); lg.issue("rmw")
                for mt in range(4):
                    a(f"ds_read_b64 v[{XSLOT+2*mt}:{XSLOT+2*mt+1}], v8 offset:{128*mt}"); lg.issue("rm")
        a.stamp(6)
        for t in range(nt):
            for k in range(4):
                a(f"ds_read_b128 v[{BF+16*t+4*k}:{BF+16*t+4*k+3}], v9 offset:{2048*t + 64*k}")
        a("s_waitcnt lgkmcnt(0)")
        O = XSLOT + 8
        for t in range(nt):
            for mp in range(2):
                ob = O + 4 * (mp % 2)
                for ml in range(2):
                    mt = 2 * mp + ml
                    mr, rr = XSLOT + 2 * mt, XSLOT + 2 * mt + 1
                    for gu in range(2):
                        g = ACC + 32 * t + 16 * gu + 4 * mt
                        cs = BF + 16 * t + 8 * gu; bb = cs + 4
                        for r in range(4):
                            a(f"v_fma_f32 v{g+r}, v{g+r}, v{rr}, v{bb+r}")
                        for r in range(4):
                            a(f"v_fma_f32 v{g+r}, v{cs+r}, v{mr}, v{g+r}")
                    g = ACC + 32 * t + 4 * mt; u = g + 16
                    for r in range(4): a(f"v_mul_f32 v{g+r}, v{g+r}, v{u+r}")
                    a(f"v_cvt_pk_bf16_f32 v{ob+2*ml}, v{g}, v{g+1}\nv_cvt_pk_bf16_f32 v{ob+2*ml+1}, v{g+2}, v{g+3}")
                a(f"""v_permlane32_swap_b32 v{ob}, v{ob+2}
                v_permlane32_swap_b32 v{ob+1}, v{ob+3}
                buffer_store_dwordx4 v[{ob}:{ob+3}], v3, s[12:15], s{48+t} offen offset:{1024*mp} sc1""")
                vx.issue("hs")
        a(f"""s_mul_i32 s26, s20, 512
        s_add_u32 s26, s26, {hex(FLAG_OFF)}
        s_lshl_b32 s27, s21, 2
        v_mov_b32 v0, s27
        v_mov_b32 v1, 1""")
        pump(99, 4)
        vx.wait(a, "hs")
        a("s_barrier")
        pump(99, 99)
        if nt == 2: a("s_branch K3_P2")
    a.label("K3_P2")
    a.stamp(7)
    ACC2 = ACC
    HR = ACC + 32
    a(f"""v_lshrrev_b32 v12, 5, v2
    v_lshlrev_b32 v12, 11, v12
    v_and_b32 v13, 31, v2
    v_lshl_add_u32 v12, v13, 4, v12
    s_lshr_b32 s23, s50, 1
    s_lshl_b32 s24, s51, 1
    s_add_u32 s24, s24, s23
    s_lshl_b32 s25, s24, 9
    v_add_u32 v13, s25, v12
    s_xor_b32 s25, s25, 512
    v_add_u32 v14, s25, v12
    v_lshlrev_b32 v15, 2, v2
    s_cmp_eq_u32 s3, 7
    s_cbranch_scc0 K3_WAIT
    s_mov_b64 exec, 1
    buffer_store_dword v1, v0, s[12:15], s26 offen sc1
    s_mov_b64 exec, 0xff
    s_mov_b32 s27, 0x100000""")
    a.label("K3_POLL")
    a(f"""buffer_load_dword v1, v15, s[12:15], s26 offen sc1
    s_sub_u32 s27, s27, 1
    s_cmp_eq_u32 s27, 0
    s_cbranch_scc1 K3_POLLED
    s_waitcnt vmcnt(0)
    v_cmp_ne_u32 vcc, 1, v1
    s_cbranch_vccnz K3_POLL""")
    a.label("K3_POLLED")
    a("s_mov_b64 exec, -1")
    a.label("K3_WAIT")
    a("s_waitcnt vmcnt(0)\ns_barrier")
    a.stamp(8)
    v2m = Cnt("vmcnt", 63)
    def hmload(j):
        a(f"s_add_u32 s55, s52, {4096*j}")
        if j == 10: a(f"s_cmp_eq_u32 s50, 3\ns_cmov_b32 s55, {hex(OOB)}")
        for ml in range(2):
            d = HR + 8 * (j % 8) + 4 * ml
            a(f"buffer_load_dwordx4 v[{d}:{d+3}], v{13+ml}, s[12:15], s55 offen sc1"); v2m.issue(("h", j))
    for j in range(8): hmload(j)
    GB = FR + 32
    XNR = FR + 40
    a(f"""s_and_b32 s23, s50, 1
    v_lshrrev_b32 v5, 4, v2           ; q
    v_lshlrev_b32 v6, 6, v5
    s_lshl_b32 s25, s21, 8
    s_lshl_b32 s27, s23, 5
    s_add_u32 s25, s25, s27
    s_add_u32 s25, s25, {5*2048}
    buffer_load_dwordx4 v[{GB}:{GB+3}], v6, s[12:15], s25 offen
    buffer_load_dwordx4 v[{GB+4}:{GB+7}], v6, s[12:15], s25 offen offset:16
    v_and_b32 v7, 15, v2
    s_lshl_b32 s25, s24, 4
    v_add_u32 v7, s25, v7             ; row64
    v_mul_u32_u24 v8, {XS}, v7
    v_lshl_add_u32 v8, v5, 5, v8
    s_lshl_b32 s25, s23, 4
    s_lshl_b32 s27, s21, 7
    s_add_u32 s25, s25, s27
    s_add_u32 s25, s25, {L_X}
    v_add_u32 v8, s25, v8
    ds_read_b128 v[{XNR}:{XNR+3}], v8
    v_lshlrev_b32 v7, 15, v7
    v_lshl_add_u32 v7, v5, 5, v7
    s_lshl_b32 s25, s20, 10
    s_lshl_b32 s27, s21, 7
    s_add_u32 s25, s25, s27
    s_lshl_b32 s27, s23, 4
    s_add_u32 s25, s25, s27
    s_mov_b32 s8, s56
    s_mov_b32 s9, s57""")
    v2m.issue("gb"); v2m.issue("gb")
    for u in range(1, 4):
        a(f"""s_xor_b32 s27, s3, {u}
        s_mul_i32 s27, s27, 6144
        v_add_u32 v{3+u if u < 3 else 9}, s27, v3""")
    redaddr = {1: 4, 2: 5, 3: 9}
    a("s_mul_i32 s27, s3, 6144\nv_add_u32 v6, s27, v3")
    for j in range(11):
        v2m.wait(a, ("h", j))
        if j == 0: a.stamp(9)
        for ml in range(2):
            for tl in range(4):
                d = ACC2 + 16 * ml + 4 * tl
                w_ = wdslot(j) + 4 * tl; h_ = HR + 8 * (j % 8) + 4 * ml
                a(f"v_mfma_f32_16x16x32_bf16 v[{d}:{d+3}], v[{w_}:{w_+3}], v[{h_}:{h_+3}], {'0' if j == 0 else f'v[{d}:{d+3}]'}")
        if j + 8 < 11:
            wdload(j + 8, v2m, ("h", j + 8)); hmload(j + 8)
    a.stamp(10)
    for u in range(1, 4):
        ml, tp = u // 2, u % 2
        for z in range(2):
            d = ACC2 + 16 * ml + 8 * tp + 4 * z
            a(f"ds_write_b128 v{redaddr[u]}, v[{d}:{d+3}] offset:{(u-1)*2048 + 1024*z}")
    XU = HR
    a("s_waitcnt lgkmcnt(6)")
    for k in range(4):
        a(f"v_lshlrev_b32 v{XU+2*k}, 16, v{XNR+k}\nv_and_b32 v{XU+2*k+1}, 0xffff0000, v{XNR+k}")
    a("s_waitcnt lgkmcnt(0)\ns_barrier")
    a.stamp(11)
    R2 = HR + 8
    for k in range(6):
        a(f"ds_read_b128 v[{R2+4*k}:{R2+4*k+3}], v6 offset:{1024*k}")
    a("s_waitcnt lgkmcnt(0)")
    for k in range(4):
        d = ACC2 + 2 * k
        a(f"""v_pk_add_f32 v[{d}:{d+1}], v[{d}:{d+1}], v[{R2+2*k}:{R2+2*k+1}]
        v_pk_add_f32 v[{R2+8+2*k}:{R2+8+2*k+1}], v[{R2+8+2*k}:{R2+8+2*k+1}], v[{R2+16+2*k}:{R2+16+2*k+1}]
        v_pk_add_f32 v[{d}:{d+1}], v[{d}:{d+1}], v[{R2+8+2*k}:{R2+8+2*k+1}]
        v_pk_fma_f32 v[{d}:{d+1}], v[{d}:{d+1}], v[{GB+2*k}:{GB+2*k+1}], v[{XU+2*k}:{XU+2*k+1}]
        v_cvt_pk_bf16_f32 v{XNR+k}, v{d}, v{d+1}""")
    a(f"buffer_store_dwordx4 v[{XNR}:{XNR+3}], v7, s[8:11], s25 offen")
    a.stamp(12)
    if Asm.STAMP: a("s_waitcnt vmcnt(0)")
    a.stamp_end(2, 8)
    a.label("K3_END")
    a("s_endpgm")

def kw(a):
    a.label("kw_kernel")
    a(f"""s_cmp_ge_u32 s2, 256
    s_cbranch_scc1 KW_END
    s_load_dwordx2 s[6:7], s[0:1], 88
    v_lshlrev_b32 v1, 4, v0
    s_bfe_u32 s20, s2, 0x10002        ; fh
    s_lshr_b32 s21, s2, 3             ; 0..31
    s_mul_i32 s22, s20, {44*32768}
    s_mul_i32 s23, s21, {44*1024}
    s_add_u32 s22, s22, s23
    s_add_u32 s22, s22, {hex(WGU_OFF)}
    s_mul_i32 s24, s20, {4*43*4096}
    s_mul_i32 s23, s21, {22*1024}
    s_add_u32 s24, s24, s23
    s_add_u32 s24, s24, {hex(WD_OFF)}
    s_waitcnt lgkmcnt(0)""")
    srd(a, 12, 6, 7, WS_SIZE)
    for i in range(11):
        a(f"buffer_load_dwordx4 v[4:7], v1, s[12:15], s22 offen\ns_add_u32 s22, s22, 4096")
    for i in range(6):
        a(f"buffer_load_dwordx4 v[4:7], v1, s[12:15], s24 offen\ns_add_u32 s24, s24, 4096")
    a("s_waitcnt vmcnt(0)")
    a.label("KW_END")
    a("s_endpgm")
```

```python
import sys
from common import *
from asmlib import *
import gen_k1
HEAD = open("adaLN_cond__spectral_gfnet__glu_gated_bilinear__prompt.s.ref").read().split("; Override launch")[0]
def desc(name, vgpr, sgpr=102, accum=None):
    accum = accum or ((vgpr + 3) // 4 * 4)
    return f""".p2align 6
.amdhsa_kernel {name}
  .amdhsa_next_free_vgpr {vgpr}
  .amdhsa_next_free_sgpr {sgpr}
  .amdhsa_accum_offset {accum}
  .amdhsa_group_segment_fixed_size 0
  .amdhsa_kernarg_size 96
  .amdhsa_user_sgpr_count 2
  .amdhsa_user_sgpr_kernarg_segment_ptr 1
  .amdhsa_system_sgpr_workgroup_id_x 1
.end_amdhsa_kernel
"""
def build(kernels, path):
    out = HEAD
    for (name, fn, grid, block, lds, vgpr, accum) in kernels:
        out += f"; @launch kernel={name} grid=({grid},1,1) block=({block},1,1) lds={lds}\n"
    out += '.amdgcn_target "amdgcn-amd-amdhsa--gfx950"\n.text\n'
    seen = set()
    for (name, fn, grid, block, lds, vgpr, accum) in kernels:
        if name in seen: continue
        seen.add(name)
        a = Asm(); fn(a)
        out += f".globl {name}\n.p2align 8\n.type {name},@function\n" + a.text()
    out += 'CODE_END:\n.section .rodata,"a"\n'
    seen = set()
    for (name, fn, grid, block, lds, vgpr, accum) in kernels:
        if name in seen: continue
        seen.add(name)
        out += desc(name, vgpr, 102, accum)
    out += tables()
    open(path, "w").write(out)
def tables():
    t = ".p2align 8\nTAB_F1:\n" + longs(tab_F1()) + "\n"
    t += ".p2align 8\nTAB_G1:\n" + longs(tab_G1()) + "\n"
    t += ".p2align 8\nTAB_K2:\n"
    for p in range(2):
        ta = tab_TA(p)
        ta2 = ta.reshape(2, 64, 2, 4).transpose(0, 2, 1, 3)
        tab = ta.copy(); tab[1] = -tab[1]
        t += longs(ta2) + "\n" + longs(tab_TAi(p)) + "\n" + longs(f2bf(tab)) + "\n"
    for p in range(2):
        for W in range(16):
            t += longs(tab_TBf(p, W)) + "\n" + longs(tab_TBi(p, W)[:1]) + "\n"
    return t
KERNELS = [("k1_kernel", gen_k1.k1, gen_k1.K1_GRID, gen_k1.K1_BLOCK, gen_k1.K1_LDS, gen_k1.K1_VGPR, None)]
try:
    import gen_k2
    KERNELS.append(("k2_kernel", gen_k2.k2, gen_k2.K2_GRID, gen_k2.K2_BLOCK, gen_k2.K2_LDS, gen_k2.K2_VGPR, None))
    import gen_k34
    import os
    if os.environ.get("WARMK"): KERNELS.append(("kw_kernel", gen_k34.kw, 256, 256, 0, 16, None))
    KERNELS.append(("k34_kernel", gen_k34.k34, 256, gen_k34.K3_BLOCK, gen_k34.K3_LDS, gen_k34.K3_VGPR, gen_k34.K3_ACC))
except ImportError as e:
    print("partial build:", e)
if __name__ == "__main__":
    path = sys.argv[1] if len(sys.argv) > 1 else "kern.s"
    if "stamp" in path: Asm.STAMP = True
    build(KERNELS, path)
```
